```python
import torch

def _softmax(x, axis=-1):
    return torch.softmax(x, dim=axis)
def _gelu(x):
    return torch.nn.functional.gelu(x, approximate="tanh")
def _silu(x):
    return torch.nn.functional.silu(x)
def _sigmoid(x):
    return torch.sigmoid(x)
def _layernorm(x, axis=-1, eps=1e-5):
    m = x.mean(dim=axis, keepdim=True)
    v = x.var(dim=axis, keepdim=True, unbiased=False)
    return (x - m) / torch.sqrt(v + eps)
def _scatter_add(tgt, idx, src, axis=0):
    return tgt.clone().index_add_(axis, idx, src)
def _segment_sum(src, seg, n):
    out = torch.zeros((n,) + src.shape[1:], dtype=src.dtype)
    return out.index_add_(0, seg, src)
def _pad(x, pw):
    flat = tuple(v for pair in reversed(pw) for v in pair)
    return torch.nn.functional.pad(x, flat)

kernel_name = 'interleave_layers__linear_kernel_hedgehog__glu_gated_geglu__prompt'

def setup_inputs():

    _w = (lambda a: (lambda t: t.to(torch.bfloat16) if t.is_floating_point() else t)(torch.as_tensor(a)))
    def _A_setup():
        B, S, D, H = 1, 2048, 640, 32
        Dh = D // H
        return {
            "x": _w((lambda *s: torch.randn(*s, dtype=torch.bfloat16) * 0.05)(B, S, D)),
            "wqkv": _w((lambda *s: torch.randn(*s, dtype=torch.bfloat16) * 0.4)(D, 3 * D)),
            "w_phi": _w((lambda *s: torch.randn(*s, dtype=torch.bfloat16) * 0.4)(H, Dh, Dh) * (Dh ** -0.5)),
            "wo": _w((lambda *s: torch.randn(*s, dtype=torch.bfloat16) * 0.05)(D, D)),
        }
    _A_in = _A_setup()

    def _B_setup():
        B, S, Dm, Df = 1, 2048, 640, 1728
        return {
            "x": _w((lambda *s: torch.randn(*s, dtype=torch.bfloat16) * 0.05)(B, S, Dm)),
            "w_gate": _w((lambda *s: torch.randn(*s, dtype=torch.bfloat16) * 1.6)(Dm, Df) * (Dm ** -0.5)),
            "w_up": _w((lambda *s: torch.randn(*s, dtype=torch.bfloat16) * 1.6)(Dm, Df) * (Dm ** -0.5)),
            "w_down": _w((lambda *s: torch.randn(*s, dtype=torch.bfloat16) * 1.6)(Df, Dm) * (Df ** -0.5)),
        }
    _B_in = _B_setup()

    return {
        "A_x": _A_in["x"],
        "A_wqkv": _A_in["wqkv"],
        "A_w_phi": _A_in["w_phi"],
        "A_wo": _A_in["wo"],
        "B_x": _B_in["x"],
        "B_w_gate": _B_in["w_gate"],
        "B_w_up": _B_in["w_up"],
        "B_w_down": _B_in["w_down"],
    }

def reference(A_x, A_wqkv, A_w_phi, A_wo, B_x, B_w_gate, B_w_up, B_w_down):
    def _A_ref(x, wqkv, w_phi, wo):
        B, S, D = x.shape
        H = 32; Dh = D // H
        qkv = (lambda x, *d: x.permute(*d))((x @ wqkv).reshape(B, S, 3, H, Dh), 2, 0, 3, 1, 4)
        q, k, v = qkv[0], qkv[1], qkv[2]
        pq = torch.einsum("bhsd,hdf->bhsf", q, w_phi)
        pk = torch.einsum("bhsd,hdf->bhsf", k, w_phi)
        phi_q = torch.concatenate([_softmax(pq, axis=-1), _softmax(-pq, axis=-1)], axis=-1)
        phi_k = torch.concatenate([_softmax(pk, axis=-1), _softmax(-pk, axis=-1)], axis=-1)
        kv = torch.einsum("bhsf,bhsd->bhfd", phi_k, v)
        z  = torch.einsum("bhsf->bhf", phi_k)
        num = torch.einsum("bhqf,bhfd->bhqd", phi_q, kv)
        den = torch.einsum("bhqf,bhf->bhq", phi_q, z)[..., None] + 1e-6
        o = num / den
        return (lambda x, *d: x.permute(*d))(o, 0, 2, 1, 3).reshape(B, S, D) @ wo

    def _B_ref(x, w_gate, w_up, w_down):
        g = torch.einsum("bsd,df->bsf", x, w_gate)
        u = torch.einsum("bsd,df->bsf", x, w_up)
        h = _gelu(g) * u
        return torch.einsum("bsf,fd->bsd", h, w_down)

    x = A_x
    x = x + _A_ref(_layernorm(x, axis=-1), A_wqkv, A_w_phi, A_wo)
    x = x + _B_ref(_layernorm(x, axis=-1), B_w_gate, B_w_up, B_w_down)
    x = x + _A_ref(_layernorm(x, axis=-1), A_wqkv, A_w_phi, A_wo)
    x = x + _B_ref(_layernorm(x, axis=-1), B_w_gate, B_w_up, B_w_down)
    return x
```

```python
import sys
NAME = "interleave_layers__linear_kernel_hedgehog__glu_gated_geglu__prompt"
S, D, H, DH, DF = 2048, 640, 32, 20, 1728
PWQKV = 0
PWO = PWQKV + 64 * 40 * 1024
PWGU = PWO + 20 * 40 * 1024
PWD = PWGU + 108 * 40 * 1024
PHIQ = PWD + 20 * 108 * 1024
PART = PHIQ + S * 1280 * 2
KVZ = PART + 32 * 32 * 40 * 128
X1 = KVZ + 32 * 3 * 1024
X2 = X1 + S * D * 2
X3 = X2 + S * D * 2
HB = X3 + S * D * 2
WS_SIZE = 268435456
XB = S * D * 2
L2E = 0x3fb8aa3b

out = []
def A(s):
    out.append("    " + s)
    if s.startswith("v_cmp"): out.append("    s_nop 1")
def L(s): out.append(s + ":")

kernels = []
def kbegin(name, grid, lds, nwg_exit=True):
    out.append(".p2align 8")
    out.append(f".globl {name}")
    out.append(f".type {name},@function")
    L(name)
    kernels.append((name, grid, lds))
    A(f"s_cmp_ge_u32 s2, {grid}")
    A(f"s_cbranch_scc1 {name}_end")
    A("s_load_dwordx2 s[4:5], s[0:1], 80")
    A("s_load_dwordx2 s[6:7], s[0:1], 64")
    A("s_load_dwordx2 s[20:21], s[0:1], 0")
    A("s_waitcnt lgkmcnt(0)")
    srd(8, 4, WS_SIZE)
    srd(12, 6, XB)
    srd(16, 20, XB)

def kend(name):
    L(name + "_end")
    A("s_endpgm")

def srd(d, b, size):
    A(f"s_mov_b32 s{d}, s{b}")
    A(f"s_and_b32 s{d+1}, s{b+1}, 0xffff")
    A(f"s_mov_b32 s{d+2}, {size}")
    A(f"s_mov_b32 s{d+3}, 0x20000")

def vr(a, n): return f"v[{a}:{a+n-1}]"

def waveid(sreg):
    A("v_lshrrev_b32 v1, 6, v0")
    A("s_nop 0")
    A(f"v_readfirstlane_b32 s{sreg}, v1")
    A("v_and_b32 v2, 31, v0")
    A("v_bfe_u32 v3, v0, 5, 1")
    A("v_and_b32 v4, 63, v0")
    A("v_lshlrev_b32 v5, 4, v4")

def xsrc(x):
    return ("s[16:19]", 0) if x is None else ("s[8:11]", x)
def xdst(x):
    return ("s[12:15]", 0) if x is None else ("s[8:11]", x)

def stage_ln(x, rowbase_s, pitch):
    sr, off = xsrc(x)
    A("v_lshrrev_b32 v6, 2, v0")
    A("v_and_b32 v7, 3, v0")
    A(f"v_add_u32 v8, s{rowbase_s}, v6")
    A("v_mul_u32_u24 v8, 1280, v8")
    A("v_lshl_add_u32 v8, v7, 4, v8")
    A(f"s_mov_b32 s30, {off}")
    for j in range(20):
        A(f"buffer_load_dwordx4 {vr(16+4*j,4)}, v8, {sr}, s30 offen offset:{64*j}")
    A(f"v_mul_u32_u24 v9, {pitch}, v6")
    A("v_lshl_add_u32 v9, v7, 4, v9")
    A("v_mov_b32 v10, 0")
    A("v_mov_b32 v11, 0")
    A("s_waitcnt vmcnt(0)")
    for r in range(16, 96):
        A(f"v_lshlrev_b32 v12, 16, v{r}")
        A(f"v_and_b32 v13, 0xffff0000, v{r}")
        A("v_add_f32 v10, v10, v12")
        A("v_add_f32 v11, v11, v13")
    A("v_add_f32 v10, v10, v11")
    A("s_nop 1")
    A("v_add_f32_dpp v10, v10, v10 quad_perm:[1,0,3,2] row_mask:0xf bank_mask:0xf")
    A("s_nop 1")
    A("v_add_f32_dpp v10, v10, v10 quad_perm:[2,3,0,1] row_mask:0xf bank_mask:0xf")
    A(f"v_mul_f32 v10, 0x3acccccd, v10")
    A("v_mov_b32 v11, 0")
    A("v_mov_b32 v14, 0")
    for r in range(16, 96):
        A(f"v_lshlrev_b32 v12, 16, v{r}")
        A(f"v_and_b32 v13, 0xffff0000, v{r}")
        A("v_sub_f32 v12, v12, v10")
        A("v_sub_f32 v13, v13, v10")
        A("v_fmac_f32 v11, v12, v12")
        A("v_fmac_f32 v14, v13, v13")
    A("v_add_f32 v11, v11, v14")
    A("s_nop 1")
    A("v_add_f32_dpp v11, v11, v11 quad_perm:[1,0,3,2] row_mask:0xf bank_mask:0xf")
    A("s_nop 1")
    A("v_add_f32_dpp v11, v11, v11 quad_perm:[2,3,0,1] row_mask:0xf bank_mask:0xf")
    A("v_mov_b32 v14, 0x3727c5ac")
    A("v_fmac_f32 v14, 0x3acccccd, v11")
    A("v_rsq_f32 v14, v14")
    A("s_nop 0")
    for r in range(16, 96):
        A(f"v_lshlrev_b32 v12, 16, v{r}")
        A(f"v_and_b32 v13, 0xffff0000, v{r}")
        A("v_sub_f32 v12, v12, v10")
        A("v_sub_f32 v13, v13, v10")
        A("v_mul_f32 v12, v12, v14")
        A("v_mul_f32 v13, v13, v14")
        A(f"v_cvt_pk_bf16_f32 v{r}, v12, v13")
    for j in range(20):
        A(f"ds_write_b128 v9, {vr(16+4*j,4)} offset:{64*j}")

def gemm(SM, SN, nsteps, PF, pitch, sW, ntstride, acc, ring, xb, tag, zero=True, ldsoff=0):
    if zero:
        for r in range(SM * SN * 16):
            A(f"v_mov_b32 v{acc+r}, 0")
    for nt in range(SN):
        A(f"v_add_u32 v{44+nt}, {nt*ntstride}, v5")
    A(f"v_mul_u32_u24 v46, {pitch}, v2")
    A("v_lshl_add_u32 v46, v3, 4, v46")
    if ldsoff:
        A(f"v_add_u32 v46, {ldsoff}, v46")
    A(f"s_mov_b32 s40, s{sW}")
    A("s_add_u32 s41, s40, 4096")
    A("s_add_u32 s42, s40, 8192")
    def wload(slot, step):
        for nt in range(SN):
            A(f"buffer_load_dwordx4 {vr(ring+(slot*SN+nt)*4,4)}, v{44+nt}, s[8:11], s{40+step//4} offen offset:{(step%4)*1024}")
    def xload(b, step):
        for st in range(SM):
            A(f"ds_read_b128 {vr(xb+(b*SM+st)*4,4)}, v46 offset:{step*32+st*32*pitch}")
    for i in range(PF):
        wload(i, i)
    A(f"s_add_u32 s40, s40, {PF*1024}")
    A(f"s_add_u32 s41, s41, {PF*1024}")
    A(f"s_add_u32 s42, s42, {PF*1024}")
    xload(0, 0)
    A(f"s_mov_b32 s43, {nsteps//PF}")
    L(f"gl_{tag}")
    for i in range(PF):
        xload((i + 1) % 2, i + 1)
        A(f"s_waitcnt vmcnt({SN*(PF-1)}) lgkmcnt({SM})")
        for st in range(SM):
            for nt in range(SN):
                a = acc + (st * SN + nt) * 16
                A(f"v_mfma_f32_32x32x16_bf16 {vr(a,16)}, {vr(ring+(i*SN+nt)*4,4)}, {vr(xb+((i%2)*SM+st)*4,4)}, {vr(a,16)}")
        wload(i, i)
    A(f"s_add_u32 s40, s40, {PF*1024}")
    A(f"s_add_u32 s41, s41, {PF*1024}")
    A(f"s_add_u32 s42, s42, {PF*1024}")
    A(f"v_add_u32 v46, {PF*32}, v46")
    A("s_sub_u32 s43, s43, 1")
    A("s_cmp_lg_u32 s43, 0")
    A(f"s_cbranch_scc1 gl_{tag}")
    A("s_waitcnt vmcnt(0) lgkmcnt(0)")
    A("s_nop 15")

def epi_resid(xin, xout, acc, rowbase_s, nbase_s):
    sr, off = xsrc(xin)
    dr, doff = xdst(xout)
    A(f"s_mov_b32 s30, {off}")
    A(f"s_mov_b32 s31, {doff}")
    for st in range(2):
        A(f"v_add_u32 v6, s{rowbase_s}, v2")
        A(f"v_add_u32 v6, {st*32}, v6")
        A("v_mul_u32_u24 v6, 1280, v6")
        A("v_lshl_add_u32 v6, v3, 3, v6")
        A(f"v_mov_b32 v7, s{nbase_s}")
        A("v_lshl_add_u32 v6, v7, 1, v6")
        for g in range(4):
            A(f"buffer_load_dwordx2 {vr(8+2*g,2)}, v6, {sr}, s30 offen offset:{16*g}")
        A("s_waitcnt vmcnt(0)")
        for g in range(4):
            a = acc + st * 16 + g * 4
            for e in range(2):
                A(f"v_lshlrev_b32 v7, 16, v{8+2*g+e}")
                A(f"v_add_f32 v{a+2*e}, v{a+2*e}, v7")
                A(f"v_and_b32 v7, 0xffff0000, v{8+2*g+e}")
                A(f"v_add_f32 v{a+2*e+1}, v{a+2*e+1}, v7")
                A(f"v_cvt_pk_bf16_f32 v{8+2*g+e}, v{a+2*e}, v{a+2*e+1}")
            A(f"buffer_store_dwordx2 {vr(8+2*g,2)}, v6, {dr}, s31 offen offset:{16*g}")

def k0():
    name = NAME + "_kernel"
    kbegin(name, 2460, 0)
    A("s_load_dwordx2 s[20:21], s[0:1], 8")
    A("s_load_dwordx2 s[22:23], s[0:1], 16")
    A("s_load_dwordx2 s[24:25], s[0:1], 24")
    A("s_load_dwordx2 s[26:27], s[0:1], 40")
    A("s_load_dwordx2 s[28:29], s[0:1], 48")
    A("s_load_dwordx2 s[30:31], s[0:1], 56")
    A("s_waitcnt lgkmcnt(0)")
    A("v_and_b32 v4, 63, v0")
    A("v_and_b32 v2, 31, v0")
    A("v_bfe_u32 v3, v0, 5, 1")
    A("v_lshrrev_b32 v1, 6, v0")
    A("s_nop 0")
    A("v_readfirstlane_b32 s33, v1")
    secs = [("qkv", 640), ("wo", 200), ("gu", 1080), ("wd", 540)]
    base = 0
    for nm, n in secs:
        A(f"s_cmp_lt_u32 s2, {base+n}")
        A(f"s_cbranch_scc1 k0_{nm}")
        base += n
    base = 0
    for nm, n in secs:
        L(f"k0_{nm}")
        KS = 108 if nm == "wd" else 40
        A(f"s_sub_u32 s34, s2, {base}")
        A("s_lshl_b32 s34, s34, 2")
        A("s_add_u32 s34, s34, s33")
        A(f"s_mul_hi_u32 s35, s34, {(2**32 + KS - 1)//KS}")
        A(f"s_mul_i32 s36, s35, {KS}")
        A("s_sub_u32 s36, s34, s36")
        wsbase = {"qkv": PWQKV, "wo": PWO, "gu": PWGU, "wd": PWD}[nm]
        A("s_lshl_b32 s37, s34, 10")
        A(f"s_add_u32 s37, s37, {wsbase}")
        A("v_lshlrev_b32 v5, 4, v4")
        A("s_lshl_b32 s38, s36, 4")
        A("v_lshl_add_u32 v6, v3, 3, s38")
        if nm != "qkv":
            N = {"wo": 640, "gu": 1728, "wd": 640}[nm]
            if nm == "gu":
                A("s_lshr_b32 s39, s35, 1")
                A("s_and_b32 s44, s35, 1")
                A("s_cmp_eq_u32 s44, 0")
                A("s_cselect_b32 s46, s26, s28")
                A("s_cselect_b32 s47, s27, s29")
                srd(40, 46, 640 * 1728 * 2)
            else:
                A("s_mov_b32 s39, s35")
                srd(40, 24 if nm == "wo" else 30, 640 * 640 * 2 if nm == "wo" else 1728 * 640 * 2)
            A("s_lshl_b32 s39, s39, 5")
            A(f"v_mul_u32_u24 v6, {N}, v6")
            A("v_add3_u32 v6, v6, v2, s39")
            A("v_lshlrev_b32 v6, 1, v6")
            for j in range(8):
                A(f"s_mov_b32 s45, {j*N*2}")
                A(f"buffer_load_ushort v{8+j}, v6, s[40:43], s45 offen")
            A("s_waitcnt vmcnt(0)")
            for j in range(4):
                A(f"v_lshl_or_b32 v{16+j}, v{9+2*j}, 16, v{8+2*j}")
        else:
            srd(40, 20, 640 * 1920 * 2)
            srd(44, 22, 32 * 400 * 2)
            A("s_lshr_b32 s39, s35, 1")
            A("s_and_b32 s48, s35, 1")
            A("s_lshl_b32 s48, s48, 4")
            A("v_lshrrev_b32 v7, 3, v2")
            A("v_lshlrev_b32 v7, 2, v7")
            A("v_and_b32 v8, 3, v2")
            A("v_add3_u32 v7, v7, v8, s48")
            A("v_bfe_u32 v8, v2, 2, 1")
            A("s_mul_i32 s49, s39, 20")
            A("v_mul_u32_u24 v9, 640, v8")
            A("v_add_u32 v9, s49, v9")
            A("s_add_u32 s50, s49, 1280")
            A("v_mov_b32 v10, s50")
            A("v_cmp_gt_u32 vcc, 20, v7")
            A("v_cndmask_b32 v9, v10, v9, vcc")
            A("s_mov_b64 s[52:53], vcc")
            A("v_mul_u32_u24 v10, 10, v8")
            A("v_add_u32 v10, v10, v7"); A("v_subrev_u32 v10, 20, v10")
            A("v_cmp_gt_u32 vcc, 30, v7")
            A("v_mov_b32 v11, 99")
            A("v_cndmask_b32 v10, v11, v10, vcc")
            A("v_min_u32 v11, 19, v7")
            A("s_mul_i32 s50, s39, 400")
            A("v_add_u32 v11, s50, v11")
            A("v_lshlrev_b32 v11, 1, v11")
            A("v_mul_u32_u24 v6, 1920, v6")
            A("v_add_u32 v6, v6, v9")
            A("v_lshlrev_b32 v6, 1, v6")
            for j in range(8):
                A(f"v_mov_b32 v{24+j}, 0")
            for d in range(20):
                A(f"buffer_load_ushort v32, v11, s[44:47], 0 offen offset:{40*d}")
                for j in range(8):
                    A(f"s_mov_b32 s51, {j*3840}")
                    A(f"buffer_load_ushort v{33+j}, v6, s[40:43], s51 offen offset:{2*d}")
                A(f"v_cmp_eq_u32 vcc, {d}, v10")
                A("v_cndmask_b32 v41, 0, 1.0, vcc")
                A("s_waitcnt vmcnt(0)")
                A("v_lshlrev_b32 v32, 16, v32")
                A("v_cndmask_b32 v32, v41, v32, s[52:53]")
                for j in range(8):
                    A(f"v_lshlrev_b32 v{33+j}, 16, v{33+j}")
                    A(f"v_fmac_f32 v{24+j}, v{33+j}, v32")
            for j in range(4):
                A(f"v_cvt_pk_bf16_f32 v{16+j}, v{24+2*j}, v{25+2*j}")
        A("buffer_store_dwordx4 v[16:19], v5, s[8:11], s37 offen")
        A(f"s_branch {name}_end")
        base += n
    kend(name)

PITCH = 1296
TKP = 144
def k1(name, x):
    ldsT = 64 * PITCH
    kbegin(name, 256, ldsT + 4 * 96 * TKP)
    waveid(32)
    A("s_lshr_b32 s33, s2, 3")
    A("s_lshl_b32 s34, s33, 6")
    A("s_and_b32 s35, s2, 7")
    A("s_lshl_b32 s35, s35, 2")
    A("s_add_u32 s35, s35, s32")
    stage_ln(x, 34, PITCH)
    A("s_waitcnt lgkmcnt(0)")
    A("s_barrier")
    A(f"s_mul_i32 s36, s35, {2*40*1024}")
    gemm(2, 2, 40, 8, PITCH, 36, 40 * 1024, 128, 64, 48, name)
    acc = 128
    A(f"s_mov_b32 s37, {L2E}")
    A(f"s_mul_i32 s38, s32, {96*TKP}")
    A(f"s_add_u32 s38, s38, {ldsT}")
    A("s_mov_b32 s44, -1")
    A("s_mov_b32 s45, 0")
    A("s_mov_b32 s46, 0")
    A("s_mov_b32 s47, -1")
    A("s_mul_i32 s39, s35, 80")
    A(f"s_add_u32 s39, s39, {PHIQ}")
    for st in range(2):
        p = [acc + st * 32 + i for i in range(20)]
        vv = [acc + st * 32 + 20 + i for i in range(10)]
        A(f"v_max3_f32 v6, v{p[0]}, v{p[1]}, v{p[2]}")
        A(f"v_min3_f32 v7, v{p[0]}, v{p[1]}, v{p[2]}")
        for i in range(3, 19, 2):
            A(f"v_max3_f32 v6, v6, v{p[i]}, v{p[i+1]}")
            A(f"v_min3_f32 v7, v7, v{p[i]}, v{p[i+1]}")
        A(f"v_max_f32 v6, v6, v{p[19]}")
        A(f"v_min_f32 v7, v7, v{p[19]}")
        A("v_mul_f32 v6, s37, v6")
        A("v_mul_f32 v7, s37, v7")
        for i in range(20):
            A(f"v_fma_f32 v{64+i}, v{p[i]}, s37, -v6")
            A(f"v_fma_f32 v{84+i}, -v{p[i]}, s37, v7")
        for i in range(40):
            A(f"v_exp_f32 v{64+i}, v{64+i}")
        A("s_nop 0")
        for b in (64, 84):
            A(f"v_add_f32 v6, v{b}, v{b+1}")
            for i in range(2, 20):
                A(f"v_add_f32 v6, v6, v{b+i}")
            A("v_rcp_f32 v6, v6")
            A("s_nop 0")
            for i in range(20):
                A(f"v_mul_f32 v{b+i}, v{b+i}, v6")
        for i in range(20):
            A(f"v_cvt_pk_bf16_f32 v{104+i}, v{64+2*i}, v{65+2*i}")
        for i in range(5):
            A(f"v_cvt_pk_bf16_f32 v{24+i}, v{vv[2*i]}, v{vv[2*i+1]}")
        A(f"v_add_u32 v8, s34, v2")
        A(f"v_add_u32 v8, {st*32}, v8")
        A("v_mul_u32_u24 v8, 2560, v8")
        A(f"v_add_u32 v9, {st*32}, v2")
        A("v_lshl_add_u32 v9, v9, 1, s38")
        A(f"v_mul_u32_u24 v10, {10*TKP}, v3")
        A("v_add_u32 v10, v10, v9")
        A("v_mov_b32 v11, 0x3f80")
        A("s_mov_b64 exec, s[44:45]")
        for i in range(5):
            A(f"buffer_store_dwordx4 {vr(104+4*i,4)}, v8, s[8:11], s39 offen offset:{16*i}")
        A(f"ds_write_b16 v9, v11 offset:{(64+20)*TKP}")
        A("s_mov_b64 exec, s[46:47]")
        for i in range(20):
            A(f"ds_write_b16 v9, v{104+i} offset:{2*i*TKP}")
            A(f"ds_write_b16_d16_hi v9, v{104+i} offset:{(2*i+1)*TKP}")
        A("s_mov_b64 exec, -1")
        for i in range(5):
            A(f"ds_write_b16 v10, v{24+i} offset:{(64+2*i)*TKP}")
            A(f"ds_write_b16_d16_hi v10, v{24+i} offset:{(64+2*i+1)*TKP}")
    A(f"v_mul_u32_u24 v9, {TKP}, v2")
    A("v_lshl_add_u32 v9, v3, 4, v9")
    A("v_add_u32 v9, s38, v9")
    A("s_waitcnt lgkmcnt(0)")
    for ks in range(4):
        A(f"ds_read_b128 {vr(64+ks*4,4)}, v9 offset:{64*TKP+ks*32}")
        for ft in range(2):
            A(f"ds_read_b128 {vr(80+(ft*4+ks)*4,4)}, v9 offset:{ft*32*TKP+ks*32}")
    for r in range(32):
        A(f"v_mov_b32 v{128+r}, 0")
    A("s_waitcnt lgkmcnt(0)")
    for ks in range(4):
        for ft in range(2):
            A(f"v_mfma_f32_32x32x16_bf16 {vr(128+ft*16,16)}, {vr(80+(ft*4+ks)*4,4)}, {vr(64+ks*4,4)}, {vr(128+ft*16,16)}")
    A("s_lshl_b32 s39, s33, 5")
    A("s_add_u32 s39, s39, s35")
    A(f"s_mul_i32 s39, s39, {40*128}")
    A(f"s_add_u32 s39, s39, {PART}")
    A("v_lshlrev_b32 v8, 9, v3")
    A("v_lshl_add_u32 v8, v2, 2, v8")
    A("v_add_u32 v7, 4096, v8")
    A("v_cmp_gt_u32 vcc, 21, v2")
    A("s_nop 15")
    A("s_mov_b64 exec, vcc")
    for ft in range(2):
        for r in range(16 if ft == 0 else 4):
            f = 8 * (r >> 2) + (r & 3)
            A(f"buffer_store_dword v{128+ft*16+r}, v{8-ft}, s[8:11], s39 offen offset:{f*128}")
    kend(name)

def kr(name):
    kbegin(name, 192, 0)
    A("s_mul_hi_u32 s33, s2, 0xaaaaaaab")
    A("s_lshr_b32 s33, s33, 2")
    A("s_mul_i32 s34, s33, 6")
    A("s_sub_u32 s34, s2, s34")
    A("s_lshl_b32 s34, s34, 8")
    A("v_add_u32 v1, s34, v0")
    A("v_lshrrev_b32 v2, 9, v1")
    A("v_bfe_u32 v3, v1, 3, 5")
    A("v_bfe_u32 v4, v1, 8, 1")
    A("v_and_b32 v5, 7, v1")
    A("v_lshlrev_b32 v6, 4, v2")
    A("v_lshl_add_u32 v6, v4, 3, v6")
    A("v_add_u32 v6, v6, v5")
    A("v_cmp_eq_u32 vcc, 24, v3")
    A("v_cndmask_b32 v7, v3, 20, vcc")
    A("v_cmp_gt_u32 vcc, 21, v7")
    A("v_cmp_gt_u32 s[40:41], 40, v6")
    A("s_and_b64 vcc, vcc, s[40:41]")
    A("v_lshlrev_b32 v8, 7, v6")
    A("v_lshl_add_u32 v8, v7, 2, v8")
    A("v_mov_b32 v9, 0x10000000")
    A("v_cndmask_b32 v8, v9, v8, vcc")
    A(f"s_mul_i32 s35, s33, {40*128}")
    A(f"s_add_u32 s35, s35, {PART}")
    for rb in range(32):
        A(f"buffer_load_dword v{16+rb}, v8, s[8:11], s35 offen")
        A(f"s_add_u32 s35, s35, {32*40*128}")
    A("s_waitcnt vmcnt(0)")
    for rb in range(1, 32):
        A(f"v_add_f32 v16, v16, v{16+rb}")
    A("v_cvt_pk_bf16_f32 v16, v16, v16")
    A("v_lshlrev_b32 v1, 1, v1")
    A("s_mul_i32 s35, s33, 3072")
    A(f"s_add_u32 s35, s35, {KVZ}")
    A("buffer_store_short v16, v1, s[8:11], s35 offen")
    kend(name)

def k2(name, xin, xout):
    kbegin(name, 160, 64 * PITCH + 64)
    waveid(32)
    A("s_mul_hi_u32 s33, s2, 0xcccccccd")
    A("s_lshr_b32 s33, s33, 2")
    A("s_mul_i32 s35, s33, 5")
    A("s_sub_u32 s35, s2, s35")
    A("s_lshl_b32 s34, s33, 6")
    A("s_mov_b32 s44, -1")
    A("s_mov_b32 s45, 0")
    A("s_mov_b32 s46, 0")
    A("s_mov_b32 s47, -1")
    for st in range(2):
        A(f"v_add_u32 v{6+st}, s34, v2")
        A(f"v_add_u32 v{6+st}, {st*32}, v{6+st}")
        A(f"v_mul_u32_u24 v{6+st}, 2560, v{6+st}")
        A(f"v_lshl_add_u32 v{6+st}, v3, 4, v{6+st}")
    A("v_mov_b32 v20, 0x7ff00000")
    for st in range(2):
        A(f"v_cndmask_b32 v{21+st}, v{6+st}, v20, s[46:47]")
    for st in range(2):
        A(f"v_add_u32 v{8+st}, {st*32}, v2")
        A(f"v_mul_u32_u24 v{8+st}, {PITCH}, v{8+st}")
        A(f"v_lshl_add_u32 v{8+st}, v3, 3, v{8+st}")
    A("s_lshl_b32 s36, s32, 3")
    def oload(b, hh):
        A(f"s_add_u32 s37, s36, {hh}")
        A("s_mul_i32 s38, s37, 3072")
        A(f"s_add_u32 s38, s38, {KVZ}")
        A("s_mul_i32 s39, s37, 80")
        A(f"s_add_u32 s39, s39, {PHIQ}")
        r0 = 64 + b * 36
        for ks in range(3):
            A(f"buffer_load_dwordx4 {vr(r0+ks*4,4)}, v5, s[8:11], s38 offen offset:{ks*1024}")
        for st in range(2):
            for ks in range(3):
                A(f"buffer_load_dwordx4 {vr(r0+12+(st*3+ks)*4,4)}, v{(21 if ks==2 else 6)+st}, s[8:11], s39 offen offset:{ks*32}")
    oload(0, 0)
    for hh in range(8):
        if hh < 7:
            oload((hh + 1) % 2, hh + 1)
            A("s_waitcnt vmcnt(9)")
        else:
            A("s_waitcnt vmcnt(0)")
        r0 = 64 + (hh % 2) * 36
        for r in range(32):
            A(f"v_mov_b32 v{144+r}, 0")
        A("s_nop 1")
        for ks in range(3):
            for st in range(2):
                A(f"v_mfma_f32_32x32x16_bf16 {vr(144+st*16,16)}, {vr(r0+ks*4,4)}, {vr(r0+12+(st*3+ks)*4,4)}, {vr(144+st*16,16)}")
        A("s_nop 15")
        A(f"s_add_u32 s37, s36, {hh}")
        A("s_mul_i32 s37, s37, 40")
        for st in range(2):
            a = 144 + st * 16
            A(f"v_cndmask_b32 v10, v{a+12}, v{a+8}, s[46:47]")
            A("v_add_f32 v10, 0x358637bd, v10")
            A("v_rcp_f32 v10, v10")
            A("s_nop 0")
            for i in range(12):
                A(f"v_mul_f32 v{a+i}, v{a+i}, v10")
            for i in range(6):
                A(f"v_cvt_pk_bf16_f32 v{12+i}, v{a+2*i}, v{a+2*i+1}")
            A(f"v_add_u32 v11, s37, v{8+st}")
            A("ds_write_b64 v11, v[12:13]")
            A("ds_write_b64 v11, v[14:15] offset:16")
            A("s_mov_b64 exec, s[44:45]")
            A("ds_write_b64 v11, v[16:17] offset:32")
            A("s_mov_b64 exec, -1")
    A("s_waitcnt lgkmcnt(0)")
    A("s_barrier")
    A("s_lshl_b32 s37, s35, 2")
    A("s_add_u32 s37, s37, s32")
    A(f"s_mul_i32 s36, s37, {40*1024}")
    A(f"s_add_u32 s36, s36, {PWO}")
    gemm(2, 1, 40, 8, PITCH, 36, 0, 128, 64, 48, name)
    A("s_lshl_b32 s37, s37, 5")
    epi_resid(xin, xout, 128, 34, 37)
    kend(name)

def k3(name, x):
    kbegin(name, 448, 64 * PITCH + 64)
    waveid(32)
    A("s_mul_hi_u32 s33, s2, 0x92492493")
    A("s_lshr_b32 s33, s33, 3")
    A("s_mul_i32 s35, s33, 14")
    A("s_sub_u32 s35, s2, s35")
    A("s_lshl_b32 s34, s33, 6")
    stage_ln(x, 34, PITCH)
    A("s_waitcnt lgkmcnt(0)")
    A("s_barrier")
    A("s_lshl_b32 s37, s35, 2")
    A("s_add_u32 s37, s37, s32")
    A("s_cmp_ge_u32 s37, 54")
    A(f"s_cbranch_scc1 {name}_end")
    A(f"s_mul_i32 s36, s37, {80*1024}")
    A(f"s_add_u32 s36, s36, {PWGU}")
    gemm(2, 2, 40, 8, PITCH, 36, 40 * 1024, 128, 64, 48, name)
    A("s_mov_b32 s38, 0x4013547a")
    A("s_mov_b32 s39, 0x3dd2d2ae")
    A(f"s_mov_b32 s40, {HB}")
    A("s_lshl_b32 s37, s37, 6")
    for st in range(2):
        A(f"v_add_u32 v6, s34, v2")
        A(f"v_add_u32 v6, {st*32}, v6")
        A("v_mul_u32_u24 v6, 3456, v6")
        A("v_lshl_add_u32 v6, v3, 3, v6")
        A("v_add_u32 v6, s37, v6")
        for r in range(16):
            g = 128 + st * 32 + r
            u = g + 16
            A(f"v_mul_f32 v7, v{g}, v{g}")
            A("v_fma_f32 v7, v7, s39, s38") if False else None
            A("v_mul_f32 v7, s39, v7")
            A("v_add_f32 v7, s38, v7")
            A(f"v_mul_f32 v7, v7, v{g}")
            A("v_exp_f32 v7, -v7")
            A("s_nop 0")
            A("v_add_f32 v7, 1.0, v7")
            A("v_rcp_f32 v7, v7")
            A("s_nop 0")
            A(f"v_mul_f32 v7, v7, v{g}")
            A(f"v_mul_f32 v{g}, v7, v{u}")
        for gq in range(4):
            a = 128 + st * 32 + gq * 4
            A(f"v_cvt_pk_bf16_f32 v8, v{a}, v{a+1}")
            A(f"v_cvt_pk_bf16_f32 v9, v{a+2}, v{a+3}")
            A(f"buffer_store_dwordx2 v[8:9], v6, s[8:11], s40 offen offset:{16*gq}")
            A("s_nop 1")
    kend(name)

P4 = 1744
def k4(name, xin, xout):
    kbegin(name, 160, 64 * P4 + 64)
    waveid(32)
    A("s_mul_hi_u32 s33, s2, 0xcccccccd")
    A("s_lshr_b32 s33, s33, 2")
    A("s_mul_i32 s35, s33, 5")
    A("s_sub_u32 s35, s2, s35")
    A("s_lshl_b32 s34, s33, 6")
    A("s_lshl_b32 s37, s35, 2")
    A("s_add_u32 s37, s37, s32")
    A(f"s_mul_i32 s36, s37, {108*1024}")
    A(f"s_add_u32 s36, s36, {PWD}")
    A("v_lshrrev_b32 v6, 2, v0")
    A("v_and_b32 v7, 3, v0")
    A("v_add_u32 v8, s34, v6")
    A("v_mul_u32_u24 v8, 3456, v8")
    A("v_lshl_add_u32 v8, v7, 4, v8")
    A(f"v_mul_u32_u24 v9, {P4}, v6")
    A("v_lshl_add_u32 v9, v7, 4, v9")
    for hf in range(2):
        A(f"s_mov_b32 s30, {HB + hf*1728}")
        for j in range(27):
            A(f"buffer_load_dwordx4 {vr(144+4*j,4)}, v8, s[8:11], s30 offen offset:{64*j}")
        if hf:
            A("s_barrier")
        A("s_waitcnt vmcnt(0)")
        for j in range(27):
            A(f"ds_write_b128 v9, {vr(144+4*j,4)} offset:{64*j}")
        A("s_waitcnt lgkmcnt(0)")
        A("s_barrier")
        gemm(2, 1, 54, 6, P4, 36, 0, 112, 64, 48, f"{name}_{hf}", zero=(hf == 0))
        A(f"s_add_u32 s36, s36, {54*1024}")
    A("s_lshl_b32 s37, s37, 5")
    epi_resid(xin, xout, 112, 34, 37)
    kend(name)

k0()
k1("k1a_kernel", None); kr("kra_kernel"); k2("k2a_kernel", None, X1); k3("k3a_kernel", X1); k4("k4a_kernel", X1, X2)
k1("k1b_kernel", X2); kr("krb_kernel"); k2("k2b_kernel", X2, X3); k3("k3b_kernel", X3); k4("k4b_kernel", X3, None)

hdr = open(f"cdna_kernels/{NAME}.s.ref").read().split("; Override")[0]
txt = hdr
for n, g, l in kernels:
    txt += f"; @launch kernel={n} grid=({g},1,1) block=(256,1,1) lds={l}\n"
txt += '.amdgcn_target "amdgcn-amd-amdhsa--gfx950"\n.text\n' + "\n".join(x for x in out if x.strip() != "None") + "\n"
txt += '.section .rodata,"a"\n'
for n, g, l in kernels:
    txt += f""".p2align 6
.amdhsa_kernel {n}
  .amdhsa_next_free_vgpr 256
  .amdhsa_next_free_sgpr 102
  .amdhsa_accum_offset 256
  .amdhsa_group_segment_fixed_size 0
  .amdhsa_kernarg_size 88
  .amdhsa_user_sgpr_count 2
  .amdhsa_user_sgpr_kernarg_segment_ptr 1
  .amdhsa_system_sgpr_workgroup_id_x 1
.end_amdhsa_kernel
"""
open(f"cdna_kernels/{NAME}.s", "w").write(txt)
print("ok", len(txt))
```

```python
import sys
NAME = "interleave_layers__linear_kernel_hedgehog__glu_gated_geglu__prompt"
S, D, H, DH, DF = 2048, 640, 32, 20, 1728
PWQKV = 0
PWO = PWQKV + 64 * 40 * 1024
PWGU = PWO + 20 * 40 * 1024
PWD = PWGU + 108 * 40 * 1024
PHIQ = PWD + 20 * 108 * 1024
PART = PHIQ + S * 1280 * 2
KVZ = PART + 32 * 32 * 40 * 128
X1 = KVZ + 32 * 3 * 1024
X2 = X1 + S * D * 2
X3 = X2 + S * D * 2
HB = X3 + S * D * 2
WS_SIZE = 268435456
XB = S * D * 2
L2E = 0x3fb8aa3b

out = []
def A(s):
    out.append("    " + s)
    if s.startswith("v_cmp"): out.append("    s_nop 1")
def L(s): out.append(s + ":")

kernels = []
def kbegin(name, grid, lds, nwg_exit=True):
    out.append(".p2align 8")
    out.append(f".globl {name}")
    out.append(f".type {name},@function")
    L(name)
    kernels.append((name, grid, lds))
    A(f"s_cmp_ge_u32 s2, {grid}")
    A(f"s_cbranch_scc1 {name}_end")
    A("s_load_dwordx2 s[4:5], s[0:1], 80")
    A("s_load_dwordx2 s[6:7], s[0:1], 64")
    A("s_load_dwordx2 s[20:21], s[0:1], 0")
    A("s_waitcnt lgkmcnt(0)")
    srd(8, 4, WS_SIZE)
    srd(12, 6, XB)
    srd(16, 20, XB)

def kend(name):
    L(name + "_end")
    A("s_endpgm")

def srd(d, b, size):
    A(f"s_mov_b32 s{d}, s{b}")
    A(f"s_and_b32 s{d+1}, s{b+1}, 0xffff")
    A(f"s_mov_b32 s{d+2}, {size}")
    A(f"s_mov_b32 s{d+3}, 0x20000")

def vr(a, n): return f"v[{a}:{a+n-1}]"

def waveid(sreg):
    A("v_lshrrev_b32 v1, 6, v0")
    A("s_nop 0")
    A(f"v_readfirstlane_b32 s{sreg}, v1")
    A("v_and_b32 v2, 31, v0")
    A("v_bfe_u32 v3, v0, 5, 1")
    A("v_and_b32 v4, 63, v0")
    A("v_lshlrev_b32 v5, 4, v4")

def xsrc(x):
    return ("s[16:19]", 0) if x is None else ("s[8:11]", x)
def xdst(x):
    return ("s[12:15]", 0) if x is None else ("s[8:11]", x)

def stage_ln(x, rowbase_s, pitch):
    sr, off = xsrc(x)
    A("v_lshrrev_b32 v6, 2, v0")
    A("v_and_b32 v7, 3, v0")
    A(f"v_add_u32 v8, s{rowbase_s}, v6")
    A("v_mul_u32_u24 v8, 1280, v8")
    A("v_lshl_add_u32 v8, v7, 4, v8")
    A(f"s_mov_b32 s30, {off}")
    for j in range(20):
        A(f"buffer_load_dwordx4 {vr(16+4*j,4)}, v8, {sr}, s30 offen offset:{64*j}")
    A(f"v_mul_u32_u24 v9, {pitch}, v6")
    A("v_lshl_add_u32 v9, v7, 4, v9")
    A("v_mov_b32 v10, 0")
    A("v_mov_b32 v11, 0")
    A("v_mov_b32 v12, 0x3f803f80")
    A("s_waitcnt vmcnt(0)")
    for r in range(16, 96):
        A(f"v_dot2c_f32_bf16 v10, v{r}, v12")
        A(f"v_dot2c_f32_bf16 v11, v{r}, v{r}")
    A("s_nop 3")
    for q in ("[1,0,3,2]", "[2,3,0,1]"):
        A(f"v_add_f32_dpp v10, v10, v10 quad_perm:{q} row_mask:0xf bank_mask:0xf")
        A(f"v_add_f32_dpp v11, v11, v11 quad_perm:{q} row_mask:0xf bank_mask:0xf")
        A("s_nop 1")
    A("v_mul_f32 v10, 0x3acccccd, v10")
    A("v_mul_f32 v11, 0x3acccccd, v11")
    A("v_fma_f32 v11, -v10, v10, v11")
    A("v_max_f32 v11, 0, v11")
    A("v_mov_b32 v14, 0x3727c5ac")
    A("v_add_f32 v14, v14, v11")
    A("v_rsq_f32 v14, v14")
    A("s_nop 0")
    A("v_mul_f32 v15, v10, v14")
    for r in range(16, 96):
        A(f"v_lshlrev_b32 v12, 16, v{r}")
        A(f"v_and_b32 v13, 0xffff0000, v{r}")
        A("v_fma_f32 v12, v12, v14, -v15")
        A("v_fma_f32 v13, v13, v14, -v15")
        A(f"v_cvt_pk_bf16_f32 v{r}, v12, v13")
    for j in range(20):
        A(f"ds_write_b128 v9, {vr(16+4*j,4)} offset:{64*j}")

def gemm(SM, SN, nsteps, PF, pitch, sW, ntstride, acc, ring, xb, tag, zero=True, ldsoff=0):
    if zero:
        for r in range(SM * SN * 16):
            A(f"v_mov_b32 v{acc+r}, 0")
    for nt in range(SN):
        A(f"v_add_u32 v{44+nt}, {nt*ntstride}, v5")
    A(f"v_mul_u32_u24 v46, {pitch}, v2")
    A("v_lshl_add_u32 v46, v3, 4, v46")
    if ldsoff:
        A(f"v_add_u32 v46, {ldsoff}, v46")
    A(f"s_mov_b32 s40, s{sW}")
    A("s_add_u32 s41, s40, 4096")
    A("s_add_u32 s42, s40, 8192")
    def wload(slot, step):
        for nt in range(SN):
            A(f"buffer_load_dwordx4 {vr(ring+(slot*SN+nt)*4,4)}, v{44+nt}, s[8:11], s{40+step//4} offen offset:{(step%4)*1024}")
    def xload(b, step):
        for st in range(SM):
            A(f"ds_read_b128 {vr(xb+(b*SM+st)*4,4)}, v46 offset:{step*32+st*32*pitch}")
    for i in range(PF):
        wload(i, i)
    A(f"s_add_u32 s40, s40, {PF*1024}")
    A(f"s_add_u32 s41, s41, {PF*1024}")
    A(f"s_add_u32 s42, s42, {PF*1024}")
    xload(0, 0)
    A(f"s_mov_b32 s43, {nsteps//PF}")
    L(f"gl_{tag}")
    for i in range(PF):
        xload((i + 1) % 2, i + 1)
        A(f"s_waitcnt vmcnt({SN*(PF-1)}) lgkmcnt({SM})")
        for st in range(SM):
            for nt in range(SN):
                a = acc + (st * SN + nt) * 16
                A(f"v_mfma_f32_32x32x16_bf16 {vr(a,16)}, {vr(ring+(i*SN+nt)*4,4)}, {vr(xb+((i%2)*SM+st)*4,4)}, {vr(a,16)}")
        wload(i, i)
    A(f"s_add_u32 s40, s40, {PF*1024}")
    A(f"s_add_u32 s41, s41, {PF*1024}")
    A(f"s_add_u32 s42, s42, {PF*1024}")
    A(f"v_add_u32 v46, {PF*32}, v46")
    A("s_sub_u32 s43, s43, 1")
    A("s_cmp_lg_u32 s43, 0")
    A(f"s_cbranch_scc1 gl_{tag}")
    A("s_waitcnt vmcnt(0) lgkmcnt(0)")
    A("s_nop 15")

def epi_resid(xin, xout, acc, rowbase_s, nbase_s):
    sr, off = xsrc(xin)
    dr, doff = xdst(xout)
    A(f"s_mov_b32 s30, {off}")
    A(f"s_mov_b32 s31, {doff}")
    for st in range(2):
        A(f"v_add_u32 v6, s{rowbase_s}, v2")
        A(f"v_add_u32 v6, {st*32}, v6")
        A("v_mul_u32_u24 v6, 1280, v6")
        A("v_lshl_add_u32 v6, v3, 3, v6")
        A(f"v_mov_b32 v7, s{nbase_s}")
        A("v_lshl_add_u32 v6, v7, 1, v6")
        for g in range(4):
            A(f"buffer_load_dwordx2 {vr(8+2*g,2)}, v6, {sr}, s30 offen offset:{16*g}")
        A("s_waitcnt vmcnt(0)")
        for g in range(4):
            a = acc + st * 16 + g * 4
            for e in range(2):
                A(f"v_lshlrev_b32 v7, 16, v{8+2*g+e}")
                A(f"v_add_f32 v{a+2*e}, v{a+2*e}, v7")
                A(f"v_and_b32 v7, 0xffff0000, v{8+2*g+e}")
                A(f"v_add_f32 v{a+2*e+1}, v{a+2*e+1}, v7")
                A(f"v_cvt_pk_bf16_f32 v{8+2*g+e}, v{a+2*e}, v{a+2*e+1}")
            A(f"buffer_store_dwordx2 {vr(8+2*g,2)}, v6, {dr}, s31 offen offset:{16*g}")

def k0():
    name = NAME + "_kernel"
    kbegin(name, 2460, 0)
    A("s_load_dwordx2 s[20:21], s[0:1], 8")
    A("s_load_dwordx2 s[22:23], s[0:1], 16")
    A("s_load_dwordx2 s[24:25], s[0:1], 24")
    A("s_load_dwordx2 s[26:27], s[0:1], 40")
    A("s_load_dwordx2 s[28:29], s[0:1], 48")
    A("s_load_dwordx2 s[30:31], s[0:1], 56")
    A("s_waitcnt lgkmcnt(0)")
    A("v_and_b32 v4, 63, v0")
    A("v_and_b32 v2, 31, v0")
    A("v_bfe_u32 v3, v0, 5, 1")
    A("v_lshrrev_b32 v1, 6, v0")
    A("s_nop 0")
    A("v_readfirstlane_b32 s33, v1")
    secs = [("qkv", 640), ("wo", 200), ("gu", 1080), ("wd", 540)]
    base = 0
    for nm, n in secs:
        A(f"s_cmp_lt_u32 s2, {base+n}")
        A(f"s_cbranch_scc1 k0_{nm}")
        base += n
    base = 0
    for nm, n in secs:
        L(f"k0_{nm}")
        KS = 108 if nm == "wd" else 40
        A(f"s_sub_u32 s34, s2, {base}")
        A("s_lshl_b32 s34, s34, 2")
        A("s_add_u32 s34, s34, s33")
        A(f"s_mul_hi_u32 s35, s34, {(2**32 + KS - 1)//KS}")
        A(f"s_mul_i32 s36, s35, {KS}")
        A("s_sub_u32 s36, s34, s36")
        wsbase = {"qkv": PWQKV, "wo": PWO, "gu": PWGU, "wd": PWD}[nm]
        A("s_lshl_b32 s37, s34, 10")
        A(f"s_add_u32 s37, s37, {wsbase}")
        A("v_lshlrev_b32 v5, 4, v4")
        A("s_lshl_b32 s38, s36, 4")
        A("v_lshl_add_u32 v6, v3, 3, s38")
        if nm != "qkv":
            N = {"wo": 640, "gu": 1728, "wd": 640}[nm]
            if nm == "gu":
                A("s_lshr_b32 s39, s35, 1")
                A("s_and_b32 s44, s35, 1")
                A("s_cmp_eq_u32 s44, 0")
                A("s_cselect_b32 s46, s26, s28")
                A("s_cselect_b32 s47, s27, s29")
                srd(40, 46, 640 * 1728 * 2)
            else:
                A("s_mov_b32 s39, s35")
                srd(40, 24 if nm == "wo" else 30, 640 * 640 * 2 if nm == "wo" else 1728 * 640 * 2)
            A("s_lshl_b32 s39, s39, 5")
            A(f"v_mul_u32_u24 v6, {N}, v6")
            A("v_add3_u32 v6, v6, v2, s39")
            A("v_lshlrev_b32 v6, 1, v6")
            for j in range(8):
                A(f"s_mov_b32 s45, {j*N*2}")
                A(f"buffer_load_ushort v{8+j}, v6, s[40:43], s45 offen")
            A("s_waitcnt vmcnt(0)")
            for j in range(4):
                A(f"v_lshl_or_b32 v{16+j}, v{9+2*j}, 16, v{8+2*j}")
        else:
            srd(40, 20, 640 * 1920 * 2)
            srd(44, 22, 32 * 400 * 2)
            A("s_lshr_b32 s39, s35, 1")
            A("s_and_b32 s48, s35, 1")
            A("s_lshl_b32 s48, s48, 4")
            A("v_lshrrev_b32 v7, 3, v2")
            A("v_lshlrev_b32 v7, 2, v7")
            A("v_and_b32 v8, 3, v2")
            A("v_add3_u32 v7, v7, v8, s48")
            A("v_bfe_u32 v8, v2, 2, 1")
            A("s_mul_i32 s49, s39, 20")
            A("v_mul_u32_u24 v9, 640, v8")
            A("v_add_u32 v9, s49, v9")
            A("s_add_u32 s50, s49, 1280")
            A("v_mov_b32 v10, s50")
            A("v_cmp_gt_u32 vcc, 20, v7")
            A("v_cndmask_b32 v9, v10, v9, vcc")
            A("s_mov_b64 s[52:53], vcc")
            A("v_mul_u32_u24 v10, 10, v8")
            A("v_add_u32 v10, v10, v7"); A("v_subrev_u32 v10, 20, v10")
            A("v_cmp_gt_u32 vcc, 30, v7")
            A("v_mov_b32 v11, 99")
            A("v_cndmask_b32 v10, v11, v10, vcc")
            A("v_min_u32 v11, 19, v7")
            A("s_mul_i32 s50, s39, 400")
            A("v_add_u32 v11, s50, v11")
            A("v_lshlrev_b32 v11, 1, v11")
            A("v_mul_u32_u24 v6, 1920, v6")
            A("v_add_u32 v6, v6, v9")
            A("v_lshlrev_b32 v6, 1, v6")
            for j in range(8):
                A(f"v_mov_b32 v{24+j}, 0")
            for d in range(20):
                A(f"buffer_load_ushort v{40+d}, v11, s[44:47], 0 offen offset:{40*d}")
            for j in range(8):
                A(f"s_mov_b32 s51, {j*3840}")
                for d in range(20):
                    A(f"buffer_load_ushort v{64+d*8+j}, v6, s[40:43], s51 offen offset:{2*d}")
            A("s_waitcnt vmcnt(0)")
            for d in range(20):
                A(f"v_cmp_eq_u32 vcc, {d}, v10")
                A("v_cndmask_b32 v33, 0, 1.0, vcc")
                A(f"v_lshlrev_b32 v32, 16, v{40+d}")
                A("v_cndmask_b32 v32, v33, v32, s[52:53]")
                for j in range(8):
                    A(f"v_lshlrev_b32 v{64+d*8+j}, 16, v{64+d*8+j}")
                    A(f"v_fmac_f32 v{24+j}, v{64+d*8+j}, v32")
            for j in range(4):
                A(f"v_cvt_pk_bf16_f32 v{16+j}, v{24+2*j}, v{25+2*j}")
        A("buffer_store_dwordx4 v[16:19], v5, s[8:11], s37 offen")
        A(f"s_branch {name}_end")
        base += n
    kend(name)

PITCH = 1296
TKP = 144
def k1(name, x):
    ldsT = 64 * PITCH
    kbegin(name, 256, ldsT + 4 * 96 * TKP)
    waveid(32)
    A("s_lshr_b32 s33, s2, 3")
    A("s_lshl_b32 s34, s33, 6")
    A("s_and_b32 s35, s2, 7")
    A("s_lshl_b32 s35, s35, 2")
    A("s_add_u32 s35, s35, s32")
    stage_ln(x, 34, PITCH)
    A("s_waitcnt lgkmcnt(0)")
    A("s_barrier")
    A(f"s_mul_i32 s36, s35, {2*40*1024}")
    gemm(2, 2, 40, 8, PITCH, 36, 40 * 1024, 128, 64, 48, name)
    acc = 128
    A(f"s_mov_b32 s37, {L2E}")
    A(f"s_mul_i32 s38, s32, {96*TKP}")
    A(f"s_add_u32 s38, s38, {ldsT}")
    A("s_mov_b32 s44, -1")
    A("s_mov_b32 s45, 0")
    A("s_mov_b32 s46, 0")
    A("s_mov_b32 s47, -1")
    A("s_mul_i32 s39, s35, 80")
    A(f"s_add_u32 s39, s39, {PHIQ}")
    for st in range(2):
        p = [acc + st * 32 + i for i in range(20)]
        vv = [acc + st * 32 + 20 + i for i in range(10)]
        A(f"v_max3_f32 v6, v{p[0]}, v{p[1]}, v{p[2]}")
        A(f"v_min3_f32 v7, v{p[0]}, v{p[1]}, v{p[2]}")
        for i in range(3, 19, 2):
            A(f"v_max3_f32 v6, v6, v{p[i]}, v{p[i+1]}")
            A(f"v_min3_f32 v7, v7, v{p[i]}, v{p[i+1]}")
        A(f"v_max_f32 v6, v6, v{p[19]}")
        A(f"v_min_f32 v7, v7, v{p[19]}")
        A("v_mul_f32 v6, s37, v6")
        A("v_mul_f32 v7, s37, v7")
        for i in range(20):
            A(f"v_fma_f32 v{64+i}, v{p[i]}, s37, -v6")
            A(f"v_fma_f32 v{84+i}, -v{p[i]}, s37, v7")
        for i in range(40):
            A(f"v_exp_f32 v{64+i}, v{64+i}")
        A("s_nop 0")
        for b in (64, 84):
            A(f"v_add_f32 v6, v{b}, v{b+1}")
            for i in range(2, 20):
                A(f"v_add_f32 v6, v6, v{b+i}")
            A("v_rcp_f32 v6, v6")
            A("s_nop 0")
            for i in range(20):
                A(f"v_mul_f32 v{b+i}, v{b+i}, v6")
        for i in range(20):
            A(f"v_cvt_pk_bf16_f32 v{104+i}, v{64+2*i}, v{65+2*i}")
        for i in range(5):
            A(f"v_cvt_pk_bf16_f32 v{24+i}, v{vv[2*i]}, v{vv[2*i+1]}")
        A(f"v_add_u32 v8, s34, v2")
        A(f"v_add_u32 v8, {st*32}, v8")
        A("v_mul_u32_u24 v8, 2560, v8")
        A(f"v_add_u32 v9, {st*32}, v2")
        A("v_lshl_add_u32 v9, v9, 1, s38")
        A(f"v_mul_u32_u24 v10, {10*TKP}, v3")
        A("v_add_u32 v10, v10, v9")
        A("v_mov_b32 v11, 0x3f80")
        A("s_mov_b64 exec, s[44:45]")
        for i in range(5):
            A(f"buffer_store_dwordx4 {vr(104+4*i,4)}, v8, s[8:11], s39 offen offset:{16*i}")
        A(f"ds_write_b16 v9, v11 offset:{(64+20)*TKP}")
        A("s_mov_b64 exec, s[46:47]")
        for i in range(20):
            A(f"ds_write_b16 v9, v{104+i} offset:{2*i*TKP}")
            A(f"ds_write_b16_d16_hi v9, v{104+i} offset:{(2*i+1)*TKP}")
        A("s_mov_b64 exec, -1")
        for i in range(5):
            A(f"ds_write_b16 v10, v{24+i} offset:{(64+2*i)*TKP}")
            A(f"ds_write_b16_d16_hi v10, v{24+i} offset:{(64+2*i+1)*TKP}")
    A(f"v_mul_u32_u24 v9, {TKP}, v2")
    A("v_lshl_add_u32 v9, v3, 4, v9")
    A("v_add_u32 v9, s38, v9")
    A("s_waitcnt lgkmcnt(0)")
    for ks in range(4):
        A(f"ds_read_b128 {vr(64+ks*4,4)}, v9 offset:{64*TKP+ks*32}")
        for ft in range(2):
            A(f"ds_read_b128 {vr(80+(ft*4+ks)*4,4)}, v9 offset:{ft*32*TKP+ks*32}")
    for r in range(32):
        A(f"v_mov_b32 v{128+r}, 0")
    A("s_waitcnt lgkmcnt(0)")
    for ks in range(4):
        for ft in range(2):
            A(f"v_mfma_f32_32x32x16_bf16 {vr(128+ft*16,16)}, {vr(80+(ft*4+ks)*4,4)}, {vr(64+ks*4,4)}, {vr(128+ft*16,16)}")
    A("s_lshl_b32 s39, s33, 5")
    A("s_add_u32 s39, s39, s35")
    A(f"s_mul_i32 s39, s39, {40*128}")
    A(f"s_add_u32 s39, s39, {PART}")
    A("v_lshlrev_b32 v8, 9, v3")
    A("v_lshl_add_u32 v8, v2, 2, v8")
    A("v_add_u32 v7, 4096, v8")
    A("v_cmp_gt_u32 vcc, 21, v2")
    A("s_nop 15")
    A("s_mov_b64 exec, vcc")
    for ft in range(2):
        for r in range(16 if ft == 0 else 4):
            f = 8 * (r >> 2) + (r & 3)
            A(f"buffer_store_dword v{128+ft*16+r}, v{8-ft}, s[8:11], s39 offen offset:{f*128}")
    kend(name)

def kr(name):
    kbegin(name, 192, 0)
    A("s_mul_hi_u32 s33, s2, 0xaaaaaaab")
    A("s_lshr_b32 s33, s33, 2")
    A("s_mul_i32 s34, s33, 6")
    A("s_sub_u32 s34, s2, s34")
    A("s_lshl_b32 s34, s34, 8")
    A("v_add_u32 v1, s34, v0")
    A("v_lshrrev_b32 v2, 9, v1")
    A("v_bfe_u32 v3, v1, 3, 5")
    A("v_bfe_u32 v4, v1, 8, 1")
    A("v_and_b32 v5, 7, v1")
    A("v_lshlrev_b32 v6, 4, v2")
    A("v_lshl_add_u32 v6, v4, 3, v6")
    A("v_add_u32 v6, v6, v5")
    A("v_cmp_eq_u32 vcc, 24, v3")
    A("v_cndmask_b32 v7, v3, 20, vcc")
    A("v_cmp_gt_u32 vcc, 21, v7")
    A("v_cmp_gt_u32 s[40:41], 40, v6")
    A("s_and_b64 vcc, vcc, s[40:41]")
    A("v_lshlrev_b32 v8, 7, v6")
    A("v_lshl_add_u32 v8, v7, 2, v8")
    A("v_mov_b32 v9, 0x10000000")
    A("v_cndmask_b32 v8, v9, v8, vcc")
    A(f"s_mul_i32 s35, s33, {40*128}")
    A(f"s_add_u32 s35, s35, {PART}")
    for rb in range(32):
        A(f"buffer_load_dword v{16+rb}, v8, s[8:11], s35 offen")
        A(f"s_add_u32 s35, s35, {32*40*128}")
    A("s_waitcnt vmcnt(0)")
    for rb in range(1, 32):
        A(f"v_add_f32 v16, v16, v{16+rb}")
    A("v_cvt_pk_bf16_f32 v16, v16, v16")
    A("v_lshlrev_b32 v1, 1, v1")
    A("s_mul_i32 s35, s33, 3072")
    A(f"s_add_u32 s35, s35, {KVZ}")
    A("buffer_store_short v16, v1, s[8:11], s35 offen")
    kend(name)

def k2(name, xin, xout):
    kbegin(name, 160, 64 * PITCH + 64)
    waveid(32)
    A("s_mul_hi_u32 s33, s2, 0xcccccccd")
    A("s_lshr_b32 s33, s33, 2")
    A("s_mul_i32 s35, s33, 5")
    A("s_sub_u32 s35, s2, s35")
    A("s_lshl_b32 s34, s33, 6")
    A("s_mov_b32 s44, -1")
    A("s_mov_b32 s45, 0")
    A("s_mov_b32 s46, 0")
    A("s_mov_b32 s47, -1")
    for st in range(2):
        A(f"v_add_u32 v{6+st}, s34, v2")
        A(f"v_add_u32 v{6+st}, {st*32}, v{6+st}")
        A(f"v_mul_u32_u24 v{6+st}, 2560, v{6+st}")
        A(f"v_lshl_add_u32 v{6+st}, v3, 4, v{6+st}")
    A("v_mov_b32 v20, 0x7ff00000")
    for st in range(2):
        A(f"v_cndmask_b32 v{21+st}, v{6+st}, v20, s[46:47]")
    for st in range(2):
        A(f"v_add_u32 v{8+st}, {st*32}, v2")
        A(f"v_mul_u32_u24 v{8+st}, {PITCH}, v{8+st}")
        A(f"v_lshl_add_u32 v{8+st}, v3, 3, v{8+st}")
    A("s_lshl_b32 s36, s32, 3")
    def oload(b, hh):
        A(f"s_add_u32 s37, s36, {hh}")
        A("s_mul_i32 s38, s37, 3072")
        A(f"s_add_u32 s38, s38, {KVZ}")
        A("s_mul_i32 s39, s37, 80")
        A(f"s_add_u32 s39, s39, {PHIQ}")
        r0 = 64 + b * 36
        for ks in range(3):
            A(f"buffer_load_dwordx4 {vr(r0+ks*4,4)}, v5, s[8:11], s38 offen offset:{ks*1024}")
        for st in range(2):
            for ks in range(3):
                A(f"buffer_load_dwordx4 {vr(r0+12+(st*3+ks)*4,4)}, v{(21 if ks==2 else 6)+st}, s[8:11], s39 offen offset:{ks*32}")
    oload(0, 0)
    for hh in range(8):
        if hh < 7:
            oload((hh + 1) % 2, hh + 1)
            A("s_waitcnt vmcnt(9)")
        else:
            A("s_waitcnt vmcnt(0)")
        r0 = 64 + (hh % 2) * 36
        for r in range(32):
            A(f"v_mov_b32 v{144+r}, 0")
        A("s_nop 1")
        for ks in range(3):
            for st in range(2):
                A(f"v_mfma_f32_32x32x16_bf16 {vr(144+st*16,16)}, {vr(r0+ks*4,4)}, {vr(r0+12+(st*3+ks)*4,4)}, {vr(144+st*16,16)}")
        A("s_nop 15")
        A(f"s_add_u32 s37, s36, {hh}")
        A("s_mul_i32 s37, s37, 40")
        for st in range(2):
            a = 144 + st * 16
            A(f"v_cndmask_b32 v10, v{a+12}, v{a+8}, s[46:47]")
            A("v_add_f32 v10, 0x358637bd, v10")
            A("v_rcp_f32 v10, v10")
            A("s_nop 0")
            for i in range(12):
                A(f"v_mul_f32 v{a+i}, v{a+i}, v10")
            for i in range(6):
                A(f"v_cvt_pk_bf16_f32 v{12+i}, v{a+2*i}, v{a+2*i+1}")
            A(f"v_add_u32 v11, s37, v{8+st}")
            A("ds_write_b64 v11, v[12:13]")
            A("ds_write_b64 v11, v[14:15] offset:16")
            A("s_mov_b64 exec, s[44:45]")
            A("ds_write_b64 v11, v[16:17] offset:32")
            A("s_mov_b64 exec, -1")
    A("s_waitcnt lgkmcnt(0)")
    A("s_barrier")
    A("s_lshl_b32 s37, s35, 2")
    A("s_add_u32 s37, s37, s32")
    A(f"s_mul_i32 s36, s37, {40*1024}")
    A(f"s_add_u32 s36, s36, {PWO}")
    gemm(2, 1, 40, 8, PITCH, 36, 0, 128, 64, 48, name)
    A("s_lshl_b32 s37, s37, 5")
    epi_resid(xin, xout, 128, 34, 37)
    kend(name)

def k3(name, x):
    kbegin(name, 448, 64 * PITCH + 64)
    waveid(32)
    A("s_mul_hi_u32 s33, s2, 0x92492493")
    A("s_lshr_b32 s33, s33, 3")
    A("s_mul_i32 s35, s33, 14")
    A("s_sub_u32 s35, s2, s35")
    A("s_lshl_b32 s34, s33, 6")
    stage_ln(x, 34, PITCH)
    A("s_waitcnt lgkmcnt(0)")
    A("s_barrier")
    A("s_lshl_b32 s37, s35, 2")
    A("s_add_u32 s37, s37, s32")
    A("s_cmp_ge_u32 s37, 54")
    A(f"s_cbranch_scc1 {name}_end")
    A(f"s_mul_i32 s36, s37, {80*1024}")
    A(f"s_add_u32 s36, s36, {PWGU}")
    gemm(2, 2, 40, 8, PITCH, 36, 40 * 1024, 128, 64, 48, name)
    A("s_mov_b32 s38, 0x4013547a")
    A("s_mov_b32 s39, 0x3dd2d2ae")
    A(f"s_mov_b32 s40, {HB}")
    A("s_lshl_b32 s37, s37, 6")
    for st in range(2):
        A(f"v_add_u32 v6, s34, v2")
        A(f"v_add_u32 v6, {st*32}, v6")
        A("v_mul_u32_u24 v6, 3456, v6")
        A("v_lshl_add_u32 v6, v3, 3, v6")
        A("v_add_u32 v6, s37, v6")
        for r in range(16):
            g = 128 + st * 32 + r
            u = g + 16
            A(f"v_mul_f32 v7, v{g}, v{g}")
            A("v_fma_f32 v7, v7, s39, s38") if False else None
            A("v_mul_f32 v7, s39, v7")
            A("v_add_f32 v7, s38, v7")
            A(f"v_mul_f32 v7, v7, v{g}")
            A("v_exp_f32 v7, -v7")
            A("s_nop 0")
            A("v_add_f32 v7, 1.0, v7")
            A("v_rcp_f32 v7, v7")
            A("s_nop 0")
            A(f"v_mul_f32 v7, v7, v{g}")
            A(f"v_mul_f32 v{g}, v7, v{u}")
        for gq in range(4):
            a = 128 + st * 32 + gq * 4
            A(f"v_cvt_pk_bf16_f32 v8, v{a}, v{a+1}")
            A(f"v_cvt_pk_bf16_f32 v9, v{a+2}, v{a+3}")
            A(f"buffer_store_dwordx2 v[8:9], v6, s[8:11], s40 offen offset:{16*gq}")
            A("s_nop 1")
    kend(name)

P4 = 1744
def k4(name, xin, xout):
    kbegin(name, 160, 64 * P4 + 64)
    waveid(32)
    A("s_mul_hi_u32 s33, s2, 0xcccccccd")
    A("s_lshr_b32 s33, s33, 2")
    A("s_mul_i32 s35, s33, 5")
    A("s_sub_u32 s35, s2, s35")
    A("s_lshl_b32 s34, s33, 6")
    A("s_lshl_b32 s37, s35, 2")
    A("s_add_u32 s37, s37, s32")
    A(f"s_mul_i32 s36, s37, {108*1024}")
    A(f"s_add_u32 s36, s36, {PWD}")
    A("v_lshrrev_b32 v6, 2, v0")
    A("v_and_b32 v7, 3, v0")
    A("v_add_u32 v8, s34, v6")
    A("v_mul_u32_u24 v8, 3456, v8")
    A("v_lshl_add_u32 v8, v7, 4, v8")
    A(f"v_mul_u32_u24 v9, {P4}, v6")
    A("v_lshl_add_u32 v9, v7, 4, v9")
    def hload(hf):
        A(f"s_mov_b32 s30, {HB + hf*1728}")
        for j in range(27):
            A(f"buffer_load_dwordx4 {vr(144+4*j,4)}, v8, s[8:11], s30 offen offset:{64*j}")
    hload(0)
    for hf in range(2):
        if hf:
            A("s_barrier")
        A("s_waitcnt vmcnt(0)")
        for j in range(27):
            A(f"ds_write_b128 v9, {vr(144+4*j,4)} offset:{64*j}")
        A("s_waitcnt lgkmcnt(0)")
        if hf == 0:
            hload(1)
        A("s_barrier")
        gemm(2, 1, 54, 6, P4, 36, 0, 112, 64, 48, f"{name}_{hf}", zero=(hf == 0))
        A(f"s_add_u32 s36, s36, {54*1024}")
    A("s_lshl_b32 s37, s37, 5")
    epi_resid(xin, xout, 112, 34, 37)
    kend(name)

k0()
k1("k1a_kernel", None); kr("kra_kernel"); k2("k2a_kernel", None, X1); k3("k3a_kernel", X1); k4("k4a_kernel", X1, X2)
k1("k1b_kernel", X2); kr("krb_kernel"); k2("k2b_kernel", X2, X3); k3("k3b_kernel", X3); k4("k4b_kernel", X3, None)

hdr = open(f"cdna_kernels/{NAME}.s.ref").read().split("; Override")[0]
txt = hdr
for n, g, l in kernels:
    txt += f"; @launch kernel={n} grid=({g},1,1) block=(256,1,1) lds={l}\n"
txt += '.amdgcn_target "amdgcn-amd-amdhsa--gfx950"\n.text\n' + "\n".join(x for x in out if x.strip() != "None") + "\n"
txt += '.section .rodata,"a"\n'
for n, g, l in kernels:
    txt += f""".p2align 6
.amdhsa_kernel {n}
  .amdhsa_next_free_vgpr 256
  .amdhsa_next_free_sgpr 102
  .amdhsa_accum_offset 256
  .amdhsa_group_segment_fixed_size 0
  .amdhsa_kernarg_size 88
  .amdhsa_user_sgpr_count 2
  .amdhsa_user_sgpr_kernarg_segment_ptr 1
  .amdhsa_system_sgpr_workgroup_id_x 1
.end_amdhsa_kernel
"""
open(f"cdna_kernels/{NAME}.s", "w").write(txt)
print("ok", len(txt))
```

```python
import sys
NAME = "interleave_layers__linear_kernel_hedgehog__glu_gated_geglu__prompt"
S, D, H, DH, DF = 2048, 640, 32, 20, 1728
PWQKV = 0
PWO = PWQKV + 64 * 40 * 1024
PWGU = PWO + 20 * 40 * 1024
PWD = PWGU + 108 * 40 * 1024
PHIQ = PWD + 20 * 108 * 1024
PART = PHIQ + S * 1280 * 2
KVZ = PART + 32 * 32 * 40 * 128
X1 = KVZ + 32 * 3 * 1024
X2 = X1 + S * D * 2
X3 = X2 + S * D * 2
HB = X3 + S * D * 2
WS_SIZE = 268435456
XB = S * D * 2
L2E = 0x3fb8aa3b

out = []
def A(s):
    out.append("    " + s)
    if s.startswith("v_cmp"): out.append("    s_nop 1")
def L(s): out.append(s + ":")

kernels = []
def kbegin(name, grid, lds, nwg_exit=True):
    out.append(".p2align 8")
    out.append(f".globl {name}")
    out.append(f".type {name},@function")
    L(name)
    kernels.append((name, grid, lds))
    A(f"s_cmp_ge_u32 s2, {grid}")
    A(f"s_cbranch_scc1 {name}_end")
    A("s_load_dwordx2 s[4:5], s[0:1], 80")
    A("s_load_dwordx2 s[6:7], s[0:1], 64")
    A("s_load_dwordx2 s[20:21], s[0:1], 0")
    A("s_waitcnt lgkmcnt(0)")
    srd(8, 4, WS_SIZE)
    srd(12, 6, XB)
    srd(16, 20, XB)

def kend(name):
    L(name + "_end")
    A("s_endpgm")

def srd(d, b, size):
    A(f"s_mov_b32 s{d}, s{b}")
    A(f"s_and_b32 s{d+1}, s{b+1}, 0xffff")
    A(f"s_mov_b32 s{d+2}, {size}")
    A(f"s_mov_b32 s{d+3}, 0x20000")

def vr(a, n): return f"v[{a}:{a+n-1}]"

def waveid(sreg):
    A("v_lshrrev_b32 v1, 6, v0")
    A("s_nop 0")
    A(f"v_readfirstlane_b32 s{sreg}, v1")
    A("v_and_b32 v2, 31, v0")
    A("v_bfe_u32 v3, v0, 5, 1")
    A("v_and_b32 v4, 63, v0")
    A("v_lshlrev_b32 v5, 4, v4")

def xsrc(x):
    return ("s[16:19]", 0) if x is None else ("s[8:11]", x)
def xdst(x):
    return ("s[12:15]", 0) if x is None else ("s[8:11]", x)

def stage_ln(x, rowbase_s, pitch):
    sr, off = xsrc(x)
    A("v_lshrrev_b32 v6, 2, v0")
    A("v_and_b32 v7, 3, v0")
    A(f"v_add_u32 v8, s{rowbase_s}, v6")
    A("v_mul_u32_u24 v8, 1280, v8")
    A("v_lshl_add_u32 v8, v7, 4, v8")
    A(f"s_mov_b32 s30, {off}")
    for j in range(20):
        A(f"buffer_load_dwordx4 {vr(16+4*j,4)}, v8, {sr}, s30 offen offset:{64*j}")
    A(f"v_mul_u32_u24 v9, {pitch}, v6")
    A("v_lshl_add_u32 v9, v7, 4, v9")
    A("v_mov_b32 v10, 0")
    A("v_mov_b32 v11, 0")
    A("v_mov_b32 v12, 0x3f803f80")
    A("s_waitcnt vmcnt(0)")
    for r in range(16, 96):
        A(f"v_dot2c_f32_bf16 v10, v{r}, v12")
        A(f"v_dot2c_f32_bf16 v11, v{r}, v{r}")
    A("s_nop 3")
    for q in ("[1,0,3,2]", "[2,3,0,1]"):
        A(f"v_add_f32_dpp v10, v10, v10 quad_perm:{q} row_mask:0xf bank_mask:0xf")
        A(f"v_add_f32_dpp v11, v11, v11 quad_perm:{q} row_mask:0xf bank_mask:0xf")
        A("s_nop 1")
    A("v_mul_f32 v10, 0x3acccccd, v10")
    A("v_mul_f32 v11, 0x3acccccd, v11")
    A("v_fma_f32 v11, -v10, v10, v11")
    A("v_max_f32 v11, 0, v11")
    A("v_mov_b32 v14, 0x3727c5ac")
    A("v_add_f32 v14, v14, v11")
    A("v_rsq_f32 v14, v14")
    A("s_nop 0")
    A("v_mul_f32 v15, v10, v14")
    for r in range(16, 96):
        A(f"v_lshlrev_b32 v12, 16, v{r}")
        A(f"v_and_b32 v13, 0xffff0000, v{r}")
        A("v_fma_f32 v12, v12, v14, -v15")
        A("v_fma_f32 v13, v13, v14, -v15")
        A(f"v_cvt_pk_bf16_f32 v{r}, v12, v13")
    for j in range(20):
        A(f"ds_write_b128 v9, {vr(16+4*j,4)} offset:{64*j}")

def gemm(SM, SN, nsteps, PF, pitch, sW, ntstride, acc, ring, xb, tag, zero=True, ldsoff=0):
    if zero:
        for r in range(SM * SN * 16):
            A(f"v_mov_b32 v{acc+r}, 0")
    for nt in range(SN):
        A(f"v_add_u32 v{44+nt}, {nt*ntstride}, v5")
    A(f"v_mul_u32_u24 v46, {pitch}, v2")
    A("v_lshl_add_u32 v46, v3, 4, v46")
    if ldsoff:
        A(f"v_add_u32 v46, {ldsoff}, v46")
    A(f"s_mov_b32 s40, s{sW}")
    NS = (PF + 3) // 4
    for q in range(1, NS):
        A(f"s_add_u32 s{40+q}, s40, {4096*q}")
    def wload(slot, step):
        for nt in range(SN):
            A(f"buffer_load_dwordx4 {vr(ring+(slot*SN+nt)*4,4)}, v{44+nt}, s[8:11], s{40+step//4} offen offset:{(step%4)*1024}")
    def xload(b, step):
        for st in range(SM):
            A(f"ds_read_b128 {vr(xb+(b*SM+st)*4,4)}, v46 offset:{step*32+st*32*pitch}")
    for i in range(PF):
        wload(i, i)
    for q in range(NS):
        A(f"s_add_u32 s{40+q}, s{40+q}, {PF*1024}")
    xload(0, 0)
    A(f"s_mov_b32 s48, {nsteps//PF}")
    L(f"gl_{tag}")
    for i in range(PF):
        xload((i + 1) % 2, i + 1)
        A(f"s_waitcnt vmcnt({SN*(PF-1)}) lgkmcnt({SM})")
        for st in range(SM):
            for nt in range(SN):
                a = acc + (st * SN + nt) * 16
                A(f"v_mfma_f32_32x32x16_bf16 {vr(a,16)}, {vr(ring+(i*SN+nt)*4,4)}, {vr(xb+((i%2)*SM+st)*4,4)}, {vr(a,16)}")
        wload(i, i)
    for q in range(NS):
        A(f"s_add_u32 s{40+q}, s{40+q}, {PF*1024}")
    A(f"v_add_u32 v46, {PF*32}, v46")
    A("s_sub_u32 s48, s48, 1")
    A("s_cmp_lg_u32 s48, 0")
    A(f"s_cbranch_scc1 gl_{tag}")
    A("s_waitcnt vmcnt(0) lgkmcnt(0)")
    A("s_nop 15")

def epi_resid(xin, xout, acc, rowbase_s, nbase_s):
    sr, off = xsrc(xin)
    dr, doff = xdst(xout)
    A(f"s_mov_b32 s30, {off}")
    A(f"s_mov_b32 s31, {doff}")
    for st in range(2):
        A(f"v_add_u32 v6, s{rowbase_s}, v2")
        A(f"v_add_u32 v6, {st*32}, v6")
        A("v_mul_u32_u24 v6, 1280, v6")
        A("v_lshl_add_u32 v6, v3, 3, v6")
        A(f"v_mov_b32 v7, s{nbase_s}")
        A("v_lshl_add_u32 v6, v7, 1, v6")
        for g in range(4):
            A(f"buffer_load_dwordx2 {vr(8+2*g,2)}, v6, {sr}, s30 offen offset:{16*g}")
        A("s_waitcnt vmcnt(0)")
        for g in range(4):
            a = acc + st * 16 + g * 4
            for e in range(2):
                A(f"v_lshlrev_b32 v7, 16, v{8+2*g+e}")
                A(f"v_add_f32 v{a+2*e}, v{a+2*e}, v7")
                A(f"v_and_b32 v7, 0xffff0000, v{8+2*g+e}")
                A(f"v_add_f32 v{a+2*e+1}, v{a+2*e+1}, v7")
                A(f"v_cvt_pk_bf16_f32 v{8+2*g+e}, v{a+2*e}, v{a+2*e+1}")
            A(f"buffer_store_dwordx2 {vr(8+2*g,2)}, v6, {dr}, s31 offen offset:{16*g}")

def k0():
    name = NAME + "_kernel"
    kbegin(name, 2460, 0)
    A("s_load_dwordx2 s[20:21], s[0:1], 8")
    A("s_load_dwordx2 s[22:23], s[0:1], 16")
    A("s_load_dwordx2 s[24:25], s[0:1], 24")
    A("s_load_dwordx2 s[26:27], s[0:1], 40")
    A("s_load_dwordx2 s[28:29], s[0:1], 48")
    A("s_load_dwordx2 s[30:31], s[0:1], 56")
    A("s_waitcnt lgkmcnt(0)")
    A("v_and_b32 v4, 63, v0")
    A("v_and_b32 v2, 31, v0")
    A("v_bfe_u32 v3, v0, 5, 1")
    A("v_lshrrev_b32 v1, 6, v0")
    A("s_nop 0")
    A("v_readfirstlane_b32 s33, v1")
    secs = [("qkv", 640), ("wo", 200), ("gu", 1080), ("wd", 540)]
    base = 0
    for nm, n in secs:
        A(f"s_cmp_lt_u32 s2, {base+n}")
        A(f"s_cbranch_scc1 k0_{nm}")
        base += n
    base = 0
    for nm, n in secs:
        L(f"k0_{nm}")
        KS = 108 if nm == "wd" else 40
        A(f"s_sub_u32 s34, s2, {base}")
        A("s_lshl_b32 s34, s34, 2")
        A("s_add_u32 s34, s34, s33")
        A(f"s_mul_hi_u32 s35, s34, {(2**32 + KS - 1)//KS}")
        A(f"s_mul_i32 s36, s35, {KS}")
        A("s_sub_u32 s36, s34, s36")
        wsbase = {"qkv": PWQKV, "wo": PWO, "gu": PWGU, "wd": PWD}[nm]
        A("s_lshl_b32 s37, s34, 10")
        A(f"s_add_u32 s37, s37, {wsbase}")
        A("v_lshlrev_b32 v5, 4, v4")
        A("s_lshl_b32 s38, s36, 4")
        A("v_lshl_add_u32 v6, v3, 3, s38")
        if nm != "qkv":
            N = {"wo": 640, "gu": 1728, "wd": 640}[nm]
            if nm == "gu":
                A("s_lshr_b32 s39, s35, 1")
                A("s_and_b32 s44, s35, 1")
                A("s_cmp_eq_u32 s44, 0")
                A("s_cselect_b32 s46, s26, s28")
                A("s_cselect_b32 s47, s27, s29")
                srd(40, 46, 640 * 1728 * 2)
            else:
                A("s_mov_b32 s39, s35")
                srd(40, 24 if nm == "wo" else 30, 640 * 640 * 2 if nm == "wo" else 1728 * 640 * 2)
            A("s_lshl_b32 s39, s39, 5")
            A(f"v_mul_u32_u24 v6, {N}, v6")
            A("v_add3_u32 v6, v6, v2, s39")
            A("v_lshlrev_b32 v6, 1, v6")
            for j in range(8):
                A(f"s_mov_b32 s45, {j*N*2}")
                A(f"buffer_load_ushort v{8+j}, v6, s[40:43], s45 offen")
            A("s_waitcnt vmcnt(0)")
            for j in range(4):
                A(f"v_lshl_or_b32 v{16+j}, v{9+2*j}, 16, v{8+2*j}")
        else:
            srd(40, 20, 640 * 1920 * 2)
            srd(44, 22, 32 * 400 * 2)
            A("s_lshr_b32 s39, s35, 1")
            A("s_and_b32 s48, s35, 1")
            A("s_lshl_b32 s48, s48, 4")
            A("v_lshrrev_b32 v7, 3, v2")
            A("v_lshlrev_b32 v7, 2, v7")
            A("v_and_b32 v8, 3, v2")
            A("v_add3_u32 v7, v7, v8, s48")
            A("v_bfe_u32 v8, v2, 2, 1")
            A("s_mul_i32 s49, s39, 20")
            A("v_mul_u32_u24 v9, 640, v8")
            A("v_add_u32 v9, s49, v9")
            A("s_add_u32 s50, s49, 1280")
            A("v_mov_b32 v10, s50")
            A("v_cmp_gt_u32 vcc, 20, v7")
            A("v_cndmask_b32 v9, v10, v9, vcc")
            A("s_mov_b64 s[52:53], vcc")
            A("v_mul_u32_u24 v10, 10, v8")
            A("v_add_u32 v10, v10, v7"); A("v_subrev_u32 v10, 20, v10")
            A("v_cmp_gt_u32 vcc, 30, v7")
            A("v_mov_b32 v11, 99")
            A("v_cndmask_b32 v10, v11, v10, vcc")
            A("v_min_u32 v11, 19, v7")
            A("s_mul_i32 s50, s39, 400")
            A("v_add_u32 v11, s50, v11")
            A("v_lshlrev_b32 v11, 1, v11")
            A("v_mul_u32_u24 v6, 1920, v6")
            A("v_add_u32 v6, v6, v9")
            A("v_lshlrev_b32 v6, 1, v6")
            for j in range(8):
                A(f"v_mov_b32 v{24+j}, 0")
            for d in range(20):
                A(f"buffer_load_ushort v{40+d}, v11, s[44:47], 0 offen offset:{40*d}")
            for j in range(8):
                A(f"s_mov_b32 s51, {j*3840}")
                for d in range(20):
                    A(f"buffer_load_ushort v{64+d*8+j}, v6, s[40:43], s51 offen offset:{2*d}")
            A("s_waitcnt vmcnt(0)")
            for d in range(20):
                A(f"v_cmp_eq_u32 vcc, {d}, v10")
                A("v_cndmask_b32 v33, 0, 1.0, vcc")
                A(f"v_lshlrev_b32 v32, 16, v{40+d}")
                A("v_cndmask_b32 v32, v33, v32, s[52:53]")
                for j in range(8):
                    A(f"v_lshlrev_b32 v{64+d*8+j}, 16, v{64+d*8+j}")
                    A(f"v_fmac_f32 v{24+j}, v{64+d*8+j}, v32")
            for j in range(4):
                A(f"v_cvt_pk_bf16_f32 v{16+j}, v{24+2*j}, v{25+2*j}")
        A("buffer_store_dwordx4 v[16:19], v5, s[8:11], s37 offen")
        A(f"s_branch {name}_end")
        base += n
    kend(name)

PITCH = 1296
TKP = 144
def k1(name, x):
    ldsT = 64 * PITCH
    kbegin(name, 256, ldsT + 4 * 96 * TKP)
    waveid(32)
    A("s_lshr_b32 s33, s2, 3")
    A("s_lshl_b32 s34, s33, 6")
    A("s_and_b32 s35, s2, 7")
    A("s_lshl_b32 s35, s35, 2")
    A("s_add_u32 s35, s35, s32")
    stage_ln(x, 34, PITCH)
    A("s_waitcnt lgkmcnt(0)")
    A("s_barrier")
    A(f"s_mul_i32 s36, s35, {2*40*1024}")
    gemm(2, 2, 40, 10, PITCH, 36, 40 * 1024, 192, 64, 48, name)
    acc = 192
    A(f"s_mov_b32 s37, {L2E}")
    A(f"s_mul_i32 s38, s32, {96*TKP}")
    A(f"s_add_u32 s38, s38, {ldsT}")
    A("s_mov_b32 s44, -1")
    A("s_mov_b32 s45, 0")
    A("s_mov_b32 s46, 0")
    A("s_mov_b32 s47, -1")
    A("s_mul_i32 s39, s35, 80")
    A(f"s_add_u32 s39, s39, {PHIQ}")
    for st in range(2):
        p = [acc + st * 32 + i for i in range(20)]
        vv = [acc + st * 32 + 20 + i for i in range(10)]
        A(f"v_max3_f32 v6, v{p[0]}, v{p[1]}, v{p[2]}")
        A(f"v_min3_f32 v7, v{p[0]}, v{p[1]}, v{p[2]}")
        for i in range(3, 19, 2):
            A(f"v_max3_f32 v6, v6, v{p[i]}, v{p[i+1]}")
            A(f"v_min3_f32 v7, v7, v{p[i]}, v{p[i+1]}")
        A(f"v_max_f32 v6, v6, v{p[19]}")
        A(f"v_min_f32 v7, v7, v{p[19]}")
        A("v_mul_f32 v6, s37, v6")
        A("v_mul_f32 v7, s37, v7")
        for i in range(20):
            A(f"v_fma_f32 v{64+i}, v{p[i]}, s37, -v6")
            A(f"v_fma_f32 v{84+i}, -v{p[i]}, s37, v7")
        for i in range(40):
            A(f"v_exp_f32 v{64+i}, v{64+i}")
        A("s_nop 0")
        for b in (64, 84):
            A(f"v_add_f32 v6, v{b}, v{b+1}")
            for i in range(2, 20):
                A(f"v_add_f32 v6, v6, v{b+i}")
            A("v_rcp_f32 v6, v6")
            A("s_nop 0")
            for i in range(20):
                A(f"v_mul_f32 v{b+i}, v{b+i}, v6")
        for i in range(20):
            A(f"v_cvt_pk_bf16_f32 v{104+i}, v{64+2*i}, v{65+2*i}")
        for i in range(5):
            A(f"v_cvt_pk_bf16_f32 v{24+i}, v{vv[2*i]}, v{vv[2*i+1]}")
        A(f"v_add_u32 v8, s34, v2")
        A(f"v_add_u32 v8, {st*32}, v8")
        A("v_mul_u32_u24 v8, 2560, v8")
        A(f"v_add_u32 v9, {st*32}, v2")
        A("v_lshl_add_u32 v9, v9, 1, s38")
        A(f"v_mul_u32_u24 v10, {10*TKP}, v3")
        A("v_add_u32 v10, v10, v9")
        A("v_mov_b32 v11, 0x3f80")
        A("s_mov_b64 exec, s[44:45]")
        for i in range(5):
            A(f"buffer_store_dwordx4 {vr(104+4*i,4)}, v8, s[8:11], s39 offen offset:{16*i}")
        A(f"ds_write_b16 v9, v11 offset:{(64+20)*TKP}")
        A("s_mov_b64 exec, s[46:47]")
        for i in range(20):
            A(f"ds_write_b16 v9, v{104+i} offset:{2*i*TKP}")
            A(f"ds_write_b16_d16_hi v9, v{104+i} offset:{(2*i+1)*TKP}")
        A("s_mov_b64 exec, -1")
        for i in range(5):
            A(f"ds_write_b16 v10, v{24+i} offset:{(64+2*i)*TKP}")
            A(f"ds_write_b16_d16_hi v10, v{24+i} offset:{(64+2*i+1)*TKP}")
    A(f"v_mul_u32_u24 v9, {TKP}, v2")
    A("v_lshl_add_u32 v9, v3, 4, v9")
    A("v_add_u32 v9, s38, v9")
    A("s_waitcnt lgkmcnt(0)")
    for ks in range(4):
        A(f"ds_read_b128 {vr(64+ks*4,4)}, v9 offset:{64*TKP+ks*32}")
        for ft in range(2):
            A(f"ds_read_b128 {vr(80+(ft*4+ks)*4,4)}, v9 offset:{ft*32*TKP+ks*32}")
    for r in range(32):
        A(f"v_mov_b32 v{128+r}, 0")
    A("s_waitcnt lgkmcnt(0)")
    for ks in range(4):
        for ft in range(2):
            A(f"v_mfma_f32_32x32x16_bf16 {vr(128+ft*16,16)}, {vr(80+(ft*4+ks)*4,4)}, {vr(64+ks*4,4)}, {vr(128+ft*16,16)}")
    A("s_lshl_b32 s39, s33, 5")
    A("s_add_u32 s39, s39, s35")
    A(f"s_mul_i32 s39, s39, {40*128}")
    A(f"s_add_u32 s39, s39, {PART}")
    A("v_lshlrev_b32 v8, 9, v3")
    A("v_lshl_add_u32 v8, v2, 2, v8")
    A("v_add_u32 v7, 4096, v8")
    A("v_cmp_gt_u32 vcc, 21, v2")
    A("s_nop 15")
    A("s_mov_b64 exec, vcc")
    for ft in range(2):
        for r in range(16 if ft == 0 else 4):
            f = 8 * (r >> 2) + (r & 3)
            A(f"buffer_store_dword v{128+ft*16+r}, v{8-ft}, s[8:11], s39 offen offset:{f*128}")
    kend(name)

def kr(name):
    kbegin(name, 192, 0)
    A("s_mul_hi_u32 s33, s2, 0xaaaaaaab")
    A("s_lshr_b32 s33, s33, 2")
    A("s_mul_i32 s34, s33, 6")
    A("s_sub_u32 s34, s2, s34")
    A("s_lshl_b32 s34, s34, 8")
    A("v_add_u32 v1, s34, v0")
    A("v_lshrrev_b32 v2, 9, v1")
    A("v_bfe_u32 v3, v1, 3, 5")
    A("v_bfe_u32 v4, v1, 8, 1")
    A("v_and_b32 v5, 7, v1")
    A("v_lshlrev_b32 v6, 4, v2")
    A("v_lshl_add_u32 v6, v4, 3, v6")
    A("v_add_u32 v6, v6, v5")
    A("v_cmp_eq_u32 vcc, 24, v3")
    A("v_cndmask_b32 v7, v3, 20, vcc")
    A("v_cmp_gt_u32 vcc, 21, v7")
    A("v_cmp_gt_u32 s[40:41], 40, v6")
    A("s_and_b64 vcc, vcc, s[40:41]")
    A("v_lshlrev_b32 v8, 7, v6")
    A("v_lshl_add_u32 v8, v7, 2, v8")
    A("v_mov_b32 v9, 0x10000000")
    A("v_cndmask_b32 v8, v9, v8, vcc")
    A(f"s_mul_i32 s35, s33, {40*128}")
    A(f"s_add_u32 s35, s35, {PART}")
    for rb in range(32):
        A(f"buffer_load_dword v{16+rb}, v8, s[8:11], s35 offen")
        A(f"s_add_u32 s35, s35, {32*40*128}")
    A("s_waitcnt vmcnt(0)")
    for rb in range(1, 32):
        A(f"v_add_f32 v16, v16, v{16+rb}")
    A("v_cvt_pk_bf16_f32 v16, v16, v16")
    A("v_lshlrev_b32 v1, 1, v1")
    A("s_mul_i32 s35, s33, 3072")
    A(f"s_add_u32 s35, s35, {KVZ}")
    A("buffer_store_short v16, v1, s[8:11], s35 offen")
    kend(name)

def k2(name, xin, xout):
    kbegin(name, 160, 64 * PITCH + 64)
    waveid(32)
    A("s_mul_hi_u32 s33, s2, 0xcccccccd")
    A("s_lshr_b32 s33, s33, 2")
    A("s_mul_i32 s35, s33, 5")
    A("s_sub_u32 s35, s2, s35")
    A("s_lshl_b32 s34, s33, 6")
    A("s_mov_b32 s44, -1")
    A("s_mov_b32 s45, 0")
    A("s_mov_b32 s46, 0")
    A("s_mov_b32 s47, -1")
    for st in range(2):
        A(f"v_add_u32 v{6+st}, s34, v2")
        A(f"v_add_u32 v{6+st}, {st*32}, v{6+st}")
        A(f"v_mul_u32_u24 v{6+st}, 2560, v{6+st}")
        A(f"v_lshl_add_u32 v{6+st}, v3, 4, v{6+st}")
    A("v_mov_b32 v20, 0x7ff00000")
    for st in range(2):
        A(f"v_cndmask_b32 v{21+st}, v{6+st}, v20, s[46:47]")
    for st in range(2):
        A(f"v_add_u32 v{8+st}, {st*32}, v2")
        A(f"v_mul_u32_u24 v{8+st}, {PITCH}, v{8+st}")
        A(f"v_lshl_add_u32 v{8+st}, v3, 3, v{8+st}")
    A("s_lshl_b32 s36, s32, 3")
    def oload(b, hh):
        A(f"s_add_u32 s37, s36, {hh}")
        A("s_mul_i32 s38, s37, 3072")
        A(f"s_add_u32 s38, s38, {KVZ}")
        A("s_mul_i32 s39, s37, 80")
        A(f"s_add_u32 s39, s39, {PHIQ}")
        r0 = 64 + b * 36
        for ks in range(3):
            A(f"buffer_load_dwordx4 {vr(r0+ks*4,4)}, v5, s[8:11], s38 offen offset:{ks*1024}")
        for st in range(2):
            for ks in range(3):
                A(f"buffer_load_dwordx4 {vr(r0+12+(st*3+ks)*4,4)}, v{(21 if ks==2 else 6)+st}, s[8:11], s39 offen offset:{ks*32}")
    oload(0, 0)
    for hh in range(8):
        if hh < 7:
            oload((hh + 1) % 2, hh + 1)
            A("s_waitcnt vmcnt(9)")
        else:
            A("s_waitcnt vmcnt(0)")
        r0 = 64 + (hh % 2) * 36
        for r in range(32):
            A(f"v_mov_b32 v{144+r}, 0")
        A("s_nop 1")
        for ks in range(3):
            for st in range(2):
                A(f"v_mfma_f32_32x32x16_bf16 {vr(144+st*16,16)}, {vr(r0+ks*4,4)}, {vr(r0+12+(st*3+ks)*4,4)}, {vr(144+st*16,16)}")
        A("s_nop 15")
        A(f"s_add_u32 s37, s36, {hh}")
        A("s_mul_i32 s37, s37, 40")
        for st in range(2):
            a = 144 + st * 16
            A(f"v_cndmask_b32 v10, v{a+12}, v{a+8}, s[46:47]")
            A("v_add_f32 v10, 0x358637bd, v10")
            A("v_rcp_f32 v10, v10")
            A("s_nop 0")
            for i in range(12):
                A(f"v_mul_f32 v{a+i}, v{a+i}, v10")
            for i in range(6):
                A(f"v_cvt_pk_bf16_f32 v{12+i}, v{a+2*i}, v{a+2*i+1}")
            A(f"v_add_u32 v11, s37, v{8+st}")
            A("ds_write_b64 v11, v[12:13]")
            A("ds_write_b64 v11, v[14:15] offset:16")
            A("s_mov_b64 exec, s[44:45]")
            A("ds_write_b64 v11, v[16:17] offset:32")
            A("s_mov_b64 exec, -1")
    A("s_waitcnt lgkmcnt(0)")
    A("s_barrier")
    A("s_lshl_b32 s37, s35, 2")
    A("s_add_u32 s37, s37, s32")
    A(f"s_mul_i32 s36, s37, {40*1024}")
    A(f"s_add_u32 s36, s36, {PWO}")
    gemm(2, 1, 40, 20, PITCH, 36, 0, 192, 64, 48, name)
    A("s_lshl_b32 s37, s37, 5")
    epi_resid(xin, xout, 192, 34, 37)
    kend(name)

def k3(name, x):
    kbegin(name, 448, 64 * PITCH + 64)
    waveid(32)
    A("s_mul_hi_u32 s33, s2, 0x92492493")
    A("s_lshr_b32 s33, s33, 3")
    A("s_mul_i32 s35, s33, 14")
    A("s_sub_u32 s35, s2, s35")
    A("s_lshl_b32 s34, s33, 6")
    stage_ln(x, 34, PITCH)
    A("s_waitcnt lgkmcnt(0)")
    A("s_barrier")
    A("s_lshl_b32 s37, s35, 2")
    A("s_add_u32 s37, s37, s32")
    A("s_cmp_ge_u32 s37, 54")
    A(f"s_cbranch_scc1 {name}_end")
    A(f"s_mul_i32 s36, s37, {80*1024}")
    A(f"s_add_u32 s36, s36, {PWGU}")
    gemm(2, 2, 40, 10, PITCH, 36, 40 * 1024, 192, 64, 48, name)
    A("s_mov_b32 s38, 0x4013547a")
    A("s_mov_b32 s39, 0x3dd2d2ae")
    A(f"s_mov_b32 s40, {HB}")
    A("s_lshl_b32 s37, s37, 6")
    for st in range(2):
        A(f"v_add_u32 v6, s34, v2")
        A(f"v_add_u32 v6, {st*32}, v6")
        A("v_mul_u32_u24 v6, 3456, v6")
        A("v_lshl_add_u32 v6, v3, 3, v6")
        A("v_add_u32 v6, s37, v6")
        for r in range(16):
            g = 192 + st * 32 + r
            u = g + 16
            A(f"v_mul_f32 v7, v{g}, v{g}")
            A("v_fma_f32 v7, v7, s39, s38") if False else None
            A("v_mul_f32 v7, s39, v7")
            A("v_add_f32 v7, s38, v7")
            A(f"v_mul_f32 v7, v7, v{g}")
            A("v_exp_f32 v7, -v7")
            A("s_nop 0")
            A("v_add_f32 v7, 1.0, v7")
            A("v_rcp_f32 v7, v7")
            A("s_nop 0")
            A(f"v_mul_f32 v7, v7, v{g}")
            A(f"v_mul_f32 v{g}, v7, v{u}")
        for gq in range(4):
            a = 192 + st * 32 + gq * 4
            A(f"v_cvt_pk_bf16_f32 v8, v{a}, v{a+1}")
            A(f"v_cvt_pk_bf16_f32 v9, v{a+2}, v{a+3}")
            A(f"buffer_store_dwordx2 v[8:9], v6, s[8:11], s40 offen offset:{16*gq}")
            A("s_nop 1")
    kend(name)

P4 = 1744
def k4(name, xin, xout):
    kbegin(name, 160, 64 * P4 + 64)
    waveid(32)
    A("s_mul_hi_u32 s33, s2, 0xcccccccd")
    A("s_lshr_b32 s33, s33, 2")
    A("s_mul_i32 s35, s33, 5")
    A("s_sub_u32 s35, s2, s35")
    A("s_lshl_b32 s34, s33, 6")
    A("s_lshl_b32 s37, s35, 2")
    A("s_add_u32 s37, s37, s32")
    A(f"s_mul_i32 s36, s37, {108*1024}")
    A(f"s_add_u32 s36, s36, {PWD}")
    A("v_lshrrev_b32 v6, 2, v0")
    A("v_and_b32 v7, 3, v0")
    A("v_add_u32 v8, s34, v6")
    A("v_mul_u32_u24 v8, 3456, v8")
    A("v_lshl_add_u32 v8, v7, 4, v8")
    A(f"v_mul_u32_u24 v9, {P4}, v6")
    A("v_lshl_add_u32 v9, v7, 4, v9")
    def hload(hf):
        A(f"s_mov_b32 s30, {HB + hf*1728}")
        for j in range(27):
            A(f"buffer_load_dwordx4 {vr(144+4*j,4)}, v8, s[8:11], s30 offen offset:{64*j}")
    hload(0)
    for hf in range(2):
        if hf:
            A("s_barrier")
        A("s_waitcnt vmcnt(0)")
        for j in range(27):
            A(f"ds_write_b128 v9, {vr(144+4*j,4)} offset:{64*j}")
        A("s_waitcnt lgkmcnt(0)")
        if hf == 0:
            hload(1)
        A("s_barrier")
        gemm(2, 1, 54, 6, P4, 36, 0, 100, 64, 48, f"{name}_{hf}", zero=(hf == 0))
        A(f"s_add_u32 s36, s36, {54*1024}")
    A("s_lshl_b32 s37, s37, 5")
    epi_resid(xin, xout, 100, 34, 37)
    kend(name)

k0()
k1("k1a_kernel", None); kr("kra_kernel"); k2("k2a_kernel", None, X1); k3("k3a_kernel", X1); k4("k4a_kernel", X1, X2)
k1("k1b_kernel", X2); kr("krb_kernel"); k2("k2b_kernel", X2, X3); k3("k3b_kernel", X3); k4("k4b_kernel", X3, None)

hdr = open(f"cdna_kernels/{NAME}.s.ref").read().split("; Override")[0]
txt = hdr
for n, g, l in kernels:
    txt += f"; @launch kernel={n} grid=({g},1,1) block=(256,1,1) lds={l}\n"
txt += '.amdgcn_target "amdgcn-amd-amdhsa--gfx950"\n.text\n' + "\n".join(x for x in out if x.strip() != "None") + "\n"
txt += '.section .rodata,"a"\n'
for n, g, l in kernels:
    txt += f""".p2align 6
.amdhsa_kernel {n}
  .amdhsa_next_free_vgpr 256
  .amdhsa_next_free_sgpr 102
  .amdhsa_accum_offset 256
  .amdhsa_group_segment_fixed_size 0
  .amdhsa_kernarg_size 88
  .amdhsa_user_sgpr_count 2
  .amdhsa_user_sgpr_kernarg_segment_ptr 1
  .amdhsa_system_sgpr_workgroup_id_x 1
.end_amdhsa_kernel
"""
open(f"cdna_kernels/{NAME}.s", "w").write(txt)
print("ok", len(txt))
```

```python
import sys
NAME = "interleave_layers__linear_kernel_hedgehog__glu_gated_geglu__prompt"
S, D, H, DH, DF = 2048, 640, 32, 20, 1728
PWQKV = 0
PWO = PWQKV + 64 * 40 * 1024
PWGU = PWO + 20 * 40 * 1024
PWD = PWGU + 108 * 40 * 1024
PHIQ = PWD + 20 * 108 * 1024
PART = PHIQ + S * 1280 * 2
KVZ = PART + 32 * 32 * 40 * 128
X1 = KVZ + 32 * 3 * 1024
X2 = X1 + S * D * 2
X3 = X2 + S * D * 2
HB = X3 + S * D * 2
WS_SIZE = 268435456
XB = S * D * 2
L2E = 0x3fb8aa3b

out = []
def A(s):
    out.append("    " + s)
    if s.startswith("v_cmp"): out.append("    s_nop 1")
def L(s): out.append(s + ":")

kernels = []
def kbegin(name, grid, lds, nwg_exit=True):
    out.append(".p2align 8")
    out.append(f".globl {name}")
    out.append(f".type {name},@function")
    L(name)
    kernels.append((name, grid, lds))
    A(f"s_cmp_ge_u32 s2, {grid}")
    A(f"s_cbranch_scc1 {name}_end")
    A("s_load_dwordx2 s[4:5], s[0:1], 80")
    A("s_load_dwordx2 s[6:7], s[0:1], 64")
    A("s_load_dwordx2 s[20:21], s[0:1], 0")
    A("s_waitcnt lgkmcnt(0)")
    srd(8, 4, WS_SIZE)
    srd(12, 6, XB)
    srd(16, 20, XB)

def kend(name):
    L(name + "_end")
    A("s_endpgm")

def srd(d, b, size):
    A(f"s_mov_b32 s{d}, s{b}")
    A(f"s_and_b32 s{d+1}, s{b+1}, 0xffff")
    A(f"s_mov_b32 s{d+2}, {size}")
    A(f"s_mov_b32 s{d+3}, 0x20000")

def vr(a, n): return f"v[{a}:{a+n-1}]"

def waveid(sreg):
    A("v_lshrrev_b32 v1, 6, v0")
    A("s_nop 0")
    A(f"v_readfirstlane_b32 s{sreg}, v1")
    A("v_and_b32 v2, 31, v0")
    A("v_bfe_u32 v3, v0, 5, 1")
    A("v_and_b32 v4, 63, v0")
    A("v_lshlrev_b32 v5, 4, v4")

def xsrc(x):
    return ("s[16:19]", 0) if x is None else ("s[8:11]", x)
def xdst(x):
    return ("s[12:15]", 0) if x is None else ("s[8:11]", x)

def stage_ln(x, rowbase_s, pitch):
    sr, off = xsrc(x)
    A("v_lshrrev_b32 v6, 2, v0")
    A("v_and_b32 v7, 3, v0")
    A(f"v_add_u32 v8, s{rowbase_s}, v6")
    A("v_mul_u32_u24 v8, 1280, v8")
    A("v_lshl_add_u32 v8, v7, 4, v8")
    A(f"s_mov_b32 s30, {off}")
    for j in range(20):
        A(f"buffer_load_dwordx4 {vr(16+4*j,4)}, v8, {sr}, s30 offen offset:{64*j}")
    A(f"v_mul_u32_u24 v9, {pitch}, v6")
    A("v_lshl_add_u32 v9, v7, 4, v9")
    A("v_mov_b32 v10, 0")
    A("v_mov_b32 v11, 0")
    A("v_mov_b32 v12, 0x3f803f80")
    A("s_waitcnt vmcnt(0)")
    for r in range(16, 96):
        A(f"v_dot2c_f32_bf16 v10, v{r}, v12")
        A(f"v_dot2c_f32_bf16 v11, v{r}, v{r}")
    A("s_nop 3")
    for q in ("[1,0,3,2]", "[2,3,0,1]"):
        A(f"v_add_f32_dpp v10, v10, v10 quad_perm:{q} row_mask:0xf bank_mask:0xf")
        A(f"v_add_f32_dpp v11, v11, v11 quad_perm:{q} row_mask:0xf bank_mask:0xf")
        A("s_nop 1")
    A("v_mul_f32 v10, 0x3acccccd, v10")
    A("v_mul_f32 v11, 0x3acccccd, v11")
    A("v_fma_f32 v11, -v10, v10, v11")
    A("v_max_f32 v11, 0, v11")
    A("v_mov_b32 v14, 0x3727c5ac")
    A("v_add_f32 v14, v14, v11")
    A("v_rsq_f32 v14, v14")
    A("s_nop 0")
    A("v_mul_f32 v15, v10, v14")
    for r in range(16, 96):
        A(f"v_lshlrev_b32 v12, 16, v{r}")
        A(f"v_and_b32 v13, 0xffff0000, v{r}")
        A("v_fma_f32 v12, v12, v14, -v15")
        A("v_fma_f32 v13, v13, v14, -v15")
        A(f"v_cvt_pk_bf16_f32 v{r}, v12, v13")
    for j in range(20):
        A(f"ds_write_b128 v9, {vr(16+4*j,4)} offset:{64*j}")

def gemm(SM, SN, nsteps, PF, pitch, sW, ntstride, acc, ring, xb, tag, zero=True, ldsoff=0):
    if zero:
        for r in range(SM * SN * 16):
            A(f"v_mov_b32 v{acc+r}, 0")
    for nt in range(SN):
        A(f"v_add_u32 v{44+nt}, {nt*ntstride}, v5")
    A(f"v_mul_u32_u24 v46, {pitch}, v2")
    A("v_lshl_add_u32 v46, v3, 4, v46")
    if ldsoff:
        A(f"v_add_u32 v46, {ldsoff}, v46")
    A(f"s_mov_b32 s40, s{sW}")
    NS = (PF + 3) // 4
    for q in range(1, NS):
        A(f"s_add_u32 s{40+q}, s40, {4096*q}")
    def wload(slot, step):
        for nt in range(SN):
            A(f"buffer_load_dwordx4 {vr(ring+(slot*SN+nt)*4,4)}, v{44+nt}, s[8:11], s{40+step//4} offen offset:{(step%4)*1024}")
    def xload(b, step):
        for st in range(SM):
            A(f"ds_read_b128 {vr(xb+(b*SM+st)*4,4)}, v46 offset:{step*32+st*32*pitch}")
    for i in range(PF):
        wload(i, i)
    for q in range(NS):
        A(f"s_add_u32 s{40+q}, s{40+q}, {PF*1024}")
    xload(0, 0)
    A(f"s_mov_b32 s48, {nsteps//PF}")
    L(f"gl_{tag}")
    for i in range(PF):
        xload((i + 1) % 2, i + 1)
        A(f"s_waitcnt vmcnt({SN*(PF-1)}) lgkmcnt({SM})")
        for st in range(SM):
            for nt in range(SN):
                a = acc + (st * SN + nt) * 16
                A(f"v_mfma_f32_32x32x16_bf16 {vr(a,16)}, {vr(ring+(i*SN+nt)*4,4)}, {vr(xb+((i%2)*SM+st)*4,4)}, {vr(a,16)}")
        wload(i, i)
    for q in range(NS):
        A(f"s_add_u32 s{40+q}, s{40+q}, {PF*1024}")
    A(f"v_add_u32 v46, {PF*32}, v46")
    A("s_sub_u32 s48, s48, 1")
    A("s_cmp_lg_u32 s48, 0")
    A(f"s_cbranch_scc1 gl_{tag}")
    A("s_waitcnt vmcnt(0) lgkmcnt(0)")
    A("s_nop 15")

def epi_resid(xin, xout, acc, rowbase_s, nbase_s):
    sr, off = xsrc(xin)
    dr, doff = xdst(xout)
    A(f"s_mov_b32 s30, {off}")
    A(f"s_mov_b32 s31, {doff}")
    for st in range(2):
        A(f"v_add_u32 v6, s{rowbase_s}, v2")
        A(f"v_add_u32 v6, {st*32}, v6")
        A("v_mul_u32_u24 v6, 1280, v6")
        A("v_lshl_add_u32 v6, v3, 3, v6")
        A(f"v_mov_b32 v7, s{nbase_s}")
        A("v_lshl_add_u32 v6, v7, 1, v6")
        for g in range(4):
            A(f"buffer_load_dwordx2 {vr(8+2*g,2)}, v6, {sr}, s30 offen offset:{16*g}")
        A("s_waitcnt vmcnt(0)")
        for g in range(4):
            a = acc + st * 16 + g * 4
            for e in range(2):
                A(f"v_lshlrev_b32 v7, 16, v{8+2*g+e}")
                A(f"v_add_f32 v{a+2*e}, v{a+2*e}, v7")
                A(f"v_and_b32 v7, 0xffff0000, v{8+2*g+e}")
                A(f"v_add_f32 v{a+2*e+1}, v{a+2*e+1}, v7")
                A(f"v_cvt_pk_bf16_f32 v{8+2*g+e}, v{a+2*e}, v{a+2*e+1}")
            A(f"buffer_store_dwordx2 {vr(8+2*g,2)}, v6, {dr}, s31 offen offset:{16*g}")

def k0():
    name = NAME + "_kernel"
    kbegin(name, 2460, 0)
    A("s_load_dwordx2 s[20:21], s[0:1], 8")
    A("s_load_dwordx2 s[22:23], s[0:1], 16")
    A("s_load_dwordx2 s[24:25], s[0:1], 24")
    A("s_load_dwordx2 s[26:27], s[0:1], 40")
    A("s_load_dwordx2 s[28:29], s[0:1], 48")
    A("s_load_dwordx2 s[30:31], s[0:1], 56")
    A("s_waitcnt lgkmcnt(0)")
    A("v_and_b32 v4, 63, v0")
    A("v_and_b32 v2, 31, v0")
    A("v_bfe_u32 v3, v0, 5, 1")
    A("v_lshrrev_b32 v1, 6, v0")
    A("s_nop 0")
    A("v_readfirstlane_b32 s33, v1")
    secs = [("qkv", 640), ("wo", 200), ("gu", 1080), ("wd", 540)]
    base = 0
    for nm, n in secs:
        A(f"s_cmp_lt_u32 s2, {base+n}")
        A(f"s_cbranch_scc1 k0_{nm}")
        base += n
    base = 0
    for nm, n in secs:
        L(f"k0_{nm}")
        KS = 108 if nm == "wd" else 40
        A(f"s_sub_u32 s34, s2, {base}")
        A("s_lshl_b32 s34, s34, 2")
        A("s_add_u32 s34, s34, s33")
        A(f"s_mul_hi_u32 s35, s34, {(2**32 + KS - 1)//KS}")
        A(f"s_mul_i32 s36, s35, {KS}")
        A("s_sub_u32 s36, s34, s36")
        wsbase = {"qkv": PWQKV, "wo": PWO, "gu": PWGU, "wd": PWD}[nm]
        A("s_lshl_b32 s37, s34, 10")
        A(f"s_add_u32 s37, s37, {wsbase}")
        A("v_lshlrev_b32 v5, 4, v4")
        A("s_lshl_b32 s38, s36, 4")
        A("v_lshl_add_u32 v6, v3, 3, s38")
        if nm != "qkv":
            N = {"wo": 640, "gu": 1728, "wd": 640}[nm]
            if nm == "gu":
                A("s_lshr_b32 s39, s35, 1")
                A("s_and_b32 s44, s35, 1")
                A("s_cmp_eq_u32 s44, 0")
                A("s_cselect_b32 s46, s26, s28")
                A("s_cselect_b32 s47, s27, s29")
                srd(40, 46, 640 * 1728 * 2)
            else:
                A("s_mov_b32 s39, s35")
                srd(40, 24 if nm == "wo" else 30, 640 * 640 * 2 if nm == "wo" else 1728 * 640 * 2)
            A("s_lshl_b32 s39, s39, 5")
            A(f"v_mul_u32_u24 v6, {N}, v6")
            A("v_add3_u32 v6, v6, v2, s39")
            A("v_lshlrev_b32 v6, 1, v6")
            for j in range(8):
                A(f"s_mov_b32 s45, {j*N*2}")
                A(f"buffer_load_ushort v{8+j}, v6, s[40:43], s45 offen")
            A("s_waitcnt vmcnt(0)")
            for j in range(4):
                A(f"v_lshl_or_b32 v{16+j}, v{9+2*j}, 16, v{8+2*j}")
        else:
            srd(40, 20, 640 * 1920 * 2)
            srd(44, 22, 32 * 400 * 2)
            A("s_lshr_b32 s39, s35, 1")
            A("s_and_b32 s48, s35, 1")
            A("s_lshl_b32 s48, s48, 4")
            A("v_lshrrev_b32 v7, 3, v2")
            A("v_lshlrev_b32 v7, 2, v7")
            A("v_and_b32 v8, 3, v2")
            A("v_add3_u32 v7, v7, v8, s48")
            A("v_bfe_u32 v8, v2, 2, 1")
            A("s_mul_i32 s49, s39, 20")
            A("v_mul_u32_u24 v9, 640, v8")
            A("v_add_u32 v9, s49, v9")
            A("s_add_u32 s50, s49, 1280")
            A("v_mov_b32 v10, s50")
            A("v_cmp_gt_u32 vcc, 20, v7")
            A("v_cndmask_b32 v9, v10, v9, vcc")
            A("s_mov_b64 s[52:53], vcc")
            A("v_mul_u32_u24 v10, 10, v8")
            A("v_add_u32 v10, v10, v7"); A("v_subrev_u32 v10, 20, v10")
            A("v_cmp_gt_u32 vcc, 30, v7")
            A("v_mov_b32 v11, 99")
            A("v_cndmask_b32 v10, v11, v10, vcc")
            A("v_min_u32 v11, 19, v7")
            A("s_mul_i32 s50, s39, 400")
            A("v_add_u32 v11, s50, v11")
            A("v_lshlrev_b32 v11, 1, v11")
            A("v_mul_u32_u24 v6, 1920, v6")
            A("v_add_u32 v6, v6, v9")
            A("v_lshlrev_b32 v6, 1, v6")
            for j in range(8):
                A(f"v_mov_b32 v{24+j}, 0")
            for d in range(20):
                A(f"buffer_load_ushort v{40+d}, v11, s[44:47], 0 offen offset:{40*d}")
            for j in range(8):
                A(f"s_mov_b32 s51, {j*3840}")
                for q in range(5):
                    A(f"buffer_load_dwordx2 {vr(64+j*10+2*q,2)}, v6, s[40:43], s51 offen offset:{8*q}")
            A("s_waitcnt vmcnt(0)")
            for d in range(20):
                A(f"v_cmp_eq_u32 vcc, {d}, v10")
                A("v_cndmask_b32 v33, 0, 1.0, vcc")
                A(f"v_lshlrev_b32 v32, 16, v{40+d}")
                A("v_cndmask_b32 v32, v33, v32, s[52:53]")
                for j in range(8):
                    if d % 2 == 0:
                        A(f"v_lshlrev_b32 v34, 16, v{64+j*10+d//2}")
                    else:
                        A(f"v_and_b32 v34, 0xffff0000, v{64+j*10+d//2}")
                    A(f"v_fmac_f32 v{24+j}, v34, v32")
            for j in range(4):
                A(f"v_cvt_pk_bf16_f32 v{16+j}, v{24+2*j}, v{25+2*j}")
        A("buffer_store_dwordx4 v[16:19], v5, s[8:11], s37 offen")
        A(f"s_branch {name}_end")
        base += n
    kend(name)

PITCH = 1296
TKP = 144
def k1(name, x):
    ldsT = 64 * PITCH
    kbegin(name, 256, ldsT + 4 * 96 * TKP)
    waveid(32)
    A("s_lshr_b32 s33, s2, 3")
    A("s_lshl_b32 s34, s33, 6")
    A("s_and_b32 s35, s2, 7")
    A("s_lshl_b32 s35, s35, 2")
    A("s_add_u32 s35, s35, s32")
    stage_ln(x, 34, PITCH)
    A("s_waitcnt lgkmcnt(0)")
    A("s_barrier")
    A(f"s_mul_i32 s36, s35, {2*40*1024}")
    gemm(2, 2, 40, 10, PITCH, 36, 40 * 1024, 192, 64, 48, name)
    acc = 192
    A(f"s_mov_b32 s37, {L2E}")
    A(f"s_mul_i32 s38, s32, {96*TKP}")
    A(f"s_add_u32 s38, s38, {ldsT}")
    A("s_mov_b32 s44, -1")
    A("s_mov_b32 s45, 0")
    A("s_mov_b32 s46, 0")
    A("s_mov_b32 s47, -1")
    A("s_mul_i32 s39, s35, 80")
    A(f"s_add_u32 s39, s39, {PHIQ}")
    for st in range(2):
        p = [acc + st * 32 + i for i in range(20)]
        vv = [acc + st * 32 + 20 + i for i in range(10)]
        A(f"v_max3_f32 v6, v{p[0]}, v{p[1]}, v{p[2]}")
        A(f"v_min3_f32 v7, v{p[0]}, v{p[1]}, v{p[2]}")
        for i in range(3, 19, 2):
            A(f"v_max3_f32 v6, v6, v{p[i]}, v{p[i+1]}")
            A(f"v_min3_f32 v7, v7, v{p[i]}, v{p[i+1]}")
        A(f"v_max_f32 v6, v6, v{p[19]}")
        A(f"v_min_f32 v7, v7, v{p[19]}")
        A("v_mul_f32 v6, s37, v6")
        A("v_mul_f32 v7, s37, v7")
        for i in range(20):
            A(f"v_fma_f32 v{64+i}, v{p[i]}, s37, -v6")
            A(f"v_fma_f32 v{84+i}, -v{p[i]}, s37, v7")
        for i in range(40):
            A(f"v_exp_f32 v{64+i}, v{64+i}")
        A("s_nop 0")
        for b in (64, 84):
            A(f"v_add_f32 v6, v{b}, v{b+1}")
            for i in range(2, 20):
                A(f"v_add_f32 v6, v6, v{b+i}")
            A("v_rcp_f32 v6, v6")
            A("s_nop 0")
            for i in range(20):
                A(f"v_mul_f32 v{b+i}, v{b+i}, v6")
        for i in range(20):
            A(f"v_cvt_pk_bf16_f32 v{104+i}, v{64+2*i}, v{65+2*i}")
        for i in range(5):
            A(f"v_cvt_pk_bf16_f32 v{24+i}, v{vv[2*i]}, v{vv[2*i+1]}")
        A(f"v_add_u32 v8, s34, v2")
        A(f"v_add_u32 v8, {st*32}, v8")
        A("v_mul_u32_u24 v8, 2560, v8")
        A(f"v_add_u32 v9, {st*32}, v2")
        A("v_lshl_add_u32 v9, v9, 1, s38")
        A(f"v_mul_u32_u24 v10, {10*TKP}, v3")
        A("v_add_u32 v10, v10, v9")
        A("v_mov_b32 v11, 0x3f80")
        A("s_mov_b64 exec, s[44:45]")
        for i in range(5):
            A(f"buffer_store_dwordx4 {vr(104+4*i,4)}, v8, s[8:11], s39 offen offset:{16*i}")
        A(f"ds_write_b16 v9, v11 offset:{(64+20)*TKP}")
        A("s_mov_b64 exec, s[46:47]")
        for i in range(20):
            A(f"ds_write_b16 v9, v{104+i} offset:{2*i*TKP}")
            A(f"ds_write_b16_d16_hi v9, v{104+i} offset:{(2*i+1)*TKP}")
        A("s_mov_b64 exec, -1")
        for i in range(5):
            A(f"ds_write_b16 v10, v{24+i} offset:{(64+2*i)*TKP}")
            A(f"ds_write_b16_d16_hi v10, v{24+i} offset:{(64+2*i+1)*TKP}")
    A(f"v_mul_u32_u24 v9, {TKP}, v2")
    A("v_lshl_add_u32 v9, v3, 4, v9")
    A("v_add_u32 v9, s38, v9")
    A("s_waitcnt lgkmcnt(0)")
    for ks in range(4):
        A(f"ds_read_b128 {vr(64+ks*4,4)}, v9 offset:{64*TKP+ks*32}")
        for ft in range(2):
            A(f"ds_read_b128 {vr(80+(ft*4+ks)*4,4)}, v9 offset:{ft*32*TKP+ks*32}")
    for r in range(32):
        A(f"v_mov_b32 v{128+r}, 0")
    A("s_waitcnt lgkmcnt(0)")
    for ks in range(4):
        for ft in range(2):
            A(f"v_mfma_f32_32x32x16_bf16 {vr(128+ft*16,16)}, {vr(80+(ft*4+ks)*4,4)}, {vr(64+ks*4,4)}, {vr(128+ft*16,16)}")
    A("s_lshl_b32 s39, s33, 5")
    A("s_add_u32 s39, s39, s35")
    A(f"s_mul_i32 s39, s39, {40*128}")
    A(f"s_add_u32 s39, s39, {PART}")
    A("v_lshlrev_b32 v8, 9, v3")
    A("v_lshl_add_u32 v8, v2, 2, v8")
    A("v_add_u32 v7, 4096, v8")
    A("v_cmp_gt_u32 vcc, 21, v2")
    A("s_nop 15")
    A("s_mov_b64 exec, vcc")
    for ft in range(2):
        for r in range(16 if ft == 0 else 4):
            f = 8 * (r >> 2) + (r & 3)
            A(f"buffer_store_dword v{128+ft*16+r}, v{8-ft}, s[8:11], s39 offen offset:{f*128}")
    kend(name)

def kr(name):
    kbegin(name, 192, 0)
    A("s_mul_hi_u32 s33, s2, 0xaaaaaaab")
    A("s_lshr_b32 s33, s33, 2")
    A("s_mul_i32 s34, s33, 6")
    A("s_sub_u32 s34, s2, s34")
    A("s_lshl_b32 s34, s34, 8")
    A("v_add_u32 v1, s34, v0")
    A("v_lshrrev_b32 v2, 9, v1")
    A("v_bfe_u32 v3, v1, 3, 5")
    A("v_bfe_u32 v4, v1, 8, 1")
    A("v_and_b32 v5, 7, v1")
    A("v_lshlrev_b32 v6, 4, v2")
    A("v_lshl_add_u32 v6, v4, 3, v6")
    A("v_add_u32 v6, v6, v5")
    A("v_cmp_eq_u32 vcc, 24, v3")
    A("v_cndmask_b32 v7, v3, 20, vcc")
    A("v_cmp_gt_u32 vcc, 21, v7")
    A("v_cmp_gt_u32 s[40:41], 40, v6")
    A("s_and_b64 vcc, vcc, s[40:41]")
    A("v_lshlrev_b32 v8, 7, v6")
    A("v_lshl_add_u32 v8, v7, 2, v8")
    A("v_mov_b32 v9, 0x10000000")
    A("v_cndmask_b32 v8, v9, v8, vcc")
    A(f"s_mul_i32 s35, s33, {40*128}")
    A(f"s_add_u32 s35, s35, {PART}")
    for rb in range(32):
        A(f"buffer_load_dword v{16+rb}, v8, s[8:11], s35 offen")
        A(f"s_add_u32 s35, s35, {32*40*128}")
    A("s_waitcnt vmcnt(0)")
    for rb in range(1, 32):
        A(f"v_add_f32 v16, v16, v{16+rb}")
    A("v_cvt_pk_bf16_f32 v16, v16, v16")
    A("v_lshlrev_b32 v1, 1, v1")
    A("s_mul_i32 s35, s33, 3072")
    A(f"s_add_u32 s35, s35, {KVZ}")
    A("buffer_store_short v16, v1, s[8:11], s35 offen")
    kend(name)

def k2(name, xin, xout):
    kbegin(name, 160, 64 * PITCH + 64)
    waveid(32)
    A("s_mul_hi_u32 s33, s2, 0xcccccccd")
    A("s_lshr_b32 s33, s33, 2")
    A("s_mul_i32 s35, s33, 5")
    A("s_sub_u32 s35, s2, s35")
    A("s_lshl_b32 s34, s33, 6")
    A("s_mov_b32 s44, -1")
    A("s_mov_b32 s45, 0")
    A("s_mov_b32 s46, 0")
    A("s_mov_b32 s47, -1")
    for st in range(2):
        A(f"v_add_u32 v{6+st}, s34, v2")
        A(f"v_add_u32 v{6+st}, {st*32}, v{6+st}")
        A(f"v_mul_u32_u24 v{6+st}, 2560, v{6+st}")
        A(f"v_lshl_add_u32 v{6+st}, v3, 4, v{6+st}")
    A("v_mov_b32 v20, 0x7ff00000")
    for st in range(2):
        A(f"v_cndmask_b32 v{21+st}, v{6+st}, v20, s[46:47]")
    for st in range(2):
        A(f"v_add_u32 v{8+st}, {st*32}, v2")
        A(f"v_mul_u32_u24 v{8+st}, {PITCH}, v{8+st}")
        A(f"v_lshl_add_u32 v{8+st}, v3, 3, v{8+st}")
    A("s_lshl_b32 s36, s32, 3")
    def oload(b, hh):
        A(f"s_add_u32 s37, s36, {hh}")
        A("s_mul_i32 s38, s37, 3072")
        A(f"s_add_u32 s38, s38, {KVZ}")
        A("s_mul_i32 s39, s37, 80")
        A(f"s_add_u32 s39, s39, {PHIQ}")
        r0 = 64 + b * 36
        for ks in range(3):
            A(f"buffer_load_dwordx4 {vr(r0+ks*4,4)}, v5, s[8:11], s38 offen offset:{ks*1024}")
        for st in range(2):
            for ks in range(3):
                A(f"buffer_load_dwordx4 {vr(r0+12+(st*3+ks)*4,4)}, v{(21 if ks==2 else 6)+st}, s[8:11], s39 offen offset:{ks*32}")
    oload(0, 0)
    for hh in range(8):
        if hh < 7:
            oload((hh + 1) % 2, hh + 1)
            A("s_waitcnt vmcnt(9)")
        else:
            A("s_waitcnt vmcnt(0)")
        r0 = 64 + (hh % 2) * 36
        for r in range(32):
            A(f"v_mov_b32 v{144+r}, 0")
        A("s_nop 1")
        for ks in range(3):
            for st in range(2):
                A(f"v_mfma_f32_32x32x16_bf16 {vr(144+st*16,16)}, {vr(r0+ks*4,4)}, {vr(r0+12+(st*3+ks)*4,4)}, {vr(144+st*16,16)}")
        A("s_nop 15")
        A(f"s_add_u32 s37, s36, {hh}")
        A("s_mul_i32 s37, s37, 40")
        for st in range(2):
            a = 144 + st * 16
            A(f"v_cndmask_b32 v10, v{a+12}, v{a+8}, s[46:47]")
            A("v_add_f32 v10, 0x358637bd, v10")
            A("v_rcp_f32 v10, v10")
            A("s_nop 0")
            for i in range(12):
                A(f"v_mul_f32 v{a+i}, v{a+i}, v10")
            for i in range(6):
                A(f"v_cvt_pk_bf16_f32 v{12+i}, v{a+2*i}, v{a+2*i+1}")
            A(f"v_add_u32 v11, s37, v{8+st}")
            A("ds_write_b64 v11, v[12:13]")
            A("ds_write_b64 v11, v[14:15] offset:16")
            A("s_mov_b64 exec, s[44:45]")
            A("ds_write_b64 v11, v[16:17] offset:32")
            A("s_mov_b64 exec, -1")
    A("s_waitcnt lgkmcnt(0)")
    A("s_barrier")
    A("s_lshl_b32 s37, s35, 2")
    A("s_add_u32 s37, s37, s32")
    A(f"s_mul_i32 s36, s37, {40*1024}")
    A(f"s_add_u32 s36, s36, {PWO}")
    gemm(2, 1, 40, 20, PITCH, 36, 0, 192, 64, 48, name)
    A("s_lshl_b32 s37, s37, 5")
    epi_resid(xin, xout, 192, 34, 37)
    kend(name)

def k3(name, x):
    kbegin(name, 448, 64 * PITCH + 64)
    waveid(32)
    A("s_mul_hi_u32 s33, s2, 0x92492493")
    A("s_lshr_b32 s33, s33, 3")
    A("s_mul_i32 s35, s33, 14")
    A("s_sub_u32 s35, s2, s35")
    A("s_lshl_b32 s34, s33, 6")
    stage_ln(x, 34, PITCH)
    A("s_waitcnt lgkmcnt(0)")
    A("s_barrier")
    A("s_lshl_b32 s37, s35, 2")
    A("s_add_u32 s37, s37, s32")
    A("s_cmp_ge_u32 s37, 54")
    A(f"s_cbranch_scc1 {name}_end")
    A(f"s_mul_i32 s36, s37, {80*1024}")
    A(f"s_add_u32 s36, s36, {PWGU}")
    gemm(2, 2, 40, 10, PITCH, 36, 40 * 1024, 192, 64, 48, name)
    A("s_mov_b32 s38, 0x4013547a")
    A("s_mov_b32 s39, 0x3dd2d2ae")
    A(f"s_mov_b32 s40, {HB}")
    A("s_lshl_b32 s37, s37, 6")
    for st in range(2):
        A(f"v_add_u32 v6, s34, v2")
        A(f"v_add_u32 v6, {st*32}, v6")
        A("v_mul_u32_u24 v6, 3456, v6")
        A("v_lshl_add_u32 v6, v3, 3, v6")
        A("v_add_u32 v6, s37, v6")
        for r in range(16):
            g = 192 + st * 32 + r
            u = g + 16
            A(f"v_mul_f32 v7, v{g}, v{g}")
            A("v_fma_f32 v7, v7, s39, s38") if False else None
            A("v_mul_f32 v7, s39, v7")
            A("v_add_f32 v7, s38, v7")
            A(f"v_mul_f32 v7, v7, v{g}")
            A("v_exp_f32 v7, -v7")
            A("s_nop 0")
            A("v_add_f32 v7, 1.0, v7")
            A("v_rcp_f32 v7, v7")
            A("s_nop 0")
            A(f"v_mul_f32 v7, v7, v{g}")
            A(f"v_mul_f32 v{g}, v7, v{u}")
        for gq in range(4):
            a = 192 + st * 32 + gq * 4
            A(f"v_cvt_pk_bf16_f32 v8, v{a}, v{a+1}")
            A(f"v_cvt_pk_bf16_f32 v9, v{a+2}, v{a+3}")
            A(f"buffer_store_dwordx2 v[8:9], v6, s[8:11], s40 offen offset:{16*gq}")
            A("s_nop 1")
    kend(name)

P4 = 1744
def k4(name, xin, xout):
    kbegin(name, 160, 64 * P4 + 64)
    waveid(32)
    A("s_mul_hi_u32 s33, s2, 0xcccccccd")
    A("s_lshr_b32 s33, s33, 2")
    A("s_mul_i32 s35, s33, 5")
    A("s_sub_u32 s35, s2, s35")
    A("s_lshl_b32 s34, s33, 6")
    A("s_lshl_b32 s37, s35, 2")
    A("s_add_u32 s37, s37, s32")
    A(f"s_mul_i32 s36, s37, {108*1024}")
    A(f"s_add_u32 s36, s36, {PWD}")
    A("v_lshrrev_b32 v6, 2, v0")
    A("v_and_b32 v7, 3, v0")
    A("v_add_u32 v8, s34, v6")
    A("v_mul_u32_u24 v8, 3456, v8")
    A("v_lshl_add_u32 v8, v7, 4, v8")
    A(f"v_mul_u32_u24 v9, {P4}, v6")
    A("v_lshl_add_u32 v9, v7, 4, v9")
    def hload(hf):
        A(f"s_mov_b32 s30, {HB + hf*1728}")
        for j in range(27):
            A(f"buffer_load_dwordx4 {vr(144+4*j,4)}, v8, s[8:11], s30 offen offset:{64*j}")
    hload(0)
    for hf in range(2):
        if hf:
            A("s_barrier")
        A("s_waitcnt vmcnt(0)")
        for j in range(27):
            A(f"ds_write_b128 v9, {vr(144+4*j,4)} offset:{64*j}")
        A("s_waitcnt lgkmcnt(0)")
        if hf == 0:
            hload(1)
        A("s_barrier")
        gemm(2, 1, 54, 6, P4, 36, 0, 100, 64, 48, f"{name}_{hf}", zero=(hf == 0))
        A(f"s_add_u32 s36, s36, {54*1024}")
    A("s_lshl_b32 s37, s37, 5")
    epi_resid(xin, xout, 100, 34, 37)
    kend(name)

k0()
k1("k1a_kernel", None); kr("kra_kernel"); k2("k2a_kernel", None, X1); k3("k3a_kernel", X1); k4("k4a_kernel", X1, X2)
k1("k1b_kernel", X2); kr("krb_kernel"); k2("k2b_kernel", X2, X3); k3("k3b_kernel", X3); k4("k4b_kernel", X3, None)

hdr = open(f"cdna_kernels/{NAME}.s.ref").read().split("; Override")[0]
txt = hdr
for n, g, l in kernels:
    txt += f"; @launch kernel={n} grid=({g},1,1) block=(256,1,1) lds={l}\n"
txt += '.amdgcn_target "amdgcn-amd-amdhsa--gfx950"\n.text\n' + "\n".join(x for x in out if x.strip() != "None") + "\n"
txt += '.section .rodata,"a"\n'
for n, g, l in kernels:
    txt += f""".p2align 6
.amdhsa_kernel {n}
  .amdhsa_next_free_vgpr 256
  .amdhsa_next_free_sgpr 102
  .amdhsa_accum_offset 256
  .amdhsa_group_segment_fixed_size 0
  .amdhsa_kernarg_size 88
  .amdhsa_user_sgpr_count 2
  .amdhsa_user_sgpr_kernarg_segment_ptr 1
  .amdhsa_system_sgpr_workgroup_id_x 1
.end_amdhsa_kernel
"""
open(f"cdna_kernels/{NAME}.s", "w").write(txt)
print("ok", len(txt))
```
